```python
import torch

def _softmax(x, axis=-1):
    return torch.softmax(x, dim=axis)
def _gelu(x):
    return torch.nn.functional.gelu(x, approximate="tanh")
def _silu(x):
    return torch.nn.functional.silu(x)
def _sigmoid(x):
    return torch.sigmoid(x)
def _layernorm(x, axis=-1, eps=1e-5):
    m = x.mean(dim=axis, keepdim=True)
    v = x.var(dim=axis, keepdim=True, unbiased=False)
    return (x - m) / torch.sqrt(v + eps)
def _scatter_add(tgt, idx, src, axis=0):
    return tgt.clone().index_add_(axis, idx, src)
def _segment_sum(src, seg, n):
    out = torch.zeros((n,) + src.shape[1:], dtype=src.dtype)
    return out.index_add_(0, seg, src)
def _pad(x, pw):
    flat = tuple(v for pair in reversed(pw) for v in pair)
    return torch.nn.functional.pad(x, flat)

kernel_name = 'sequential_preLN__linear_kernel_hedgehog__glu_gated_reglu__prompt'

def setup_inputs():

    _w = (lambda a: (lambda t: t.to(torch.bfloat16) if t.is_floating_point() else t)(torch.as_tensor(a)))
    def _A_setup():
        B, S, D, H = 1, 2048, 640, 32
        Dh = D // H
        return {
            "x": _w((lambda *s: torch.randn(*s, dtype=torch.bfloat16) * 0.05)(B, S, D)),
            "wqkv": _w((lambda *s: torch.randn(*s, dtype=torch.bfloat16) * 0.2)(D, 3 * D)),
            "w_phi": _w((lambda *s: torch.randn(*s, dtype=torch.bfloat16) * 0.2)(H, Dh, Dh) * (Dh ** -0.5)),
            "wo": _w((lambda *s: torch.randn(*s, dtype=torch.bfloat16) * 0.05)(D, D)),
        }
    _A_in = _A_setup()

    def _B_setup():
        B, S, D, F = 1, 2048, 640, 1536
        return {
            "x": _w((lambda *s: torch.randn(*s, dtype=torch.bfloat16) * 0.05)(B, S, D)),
            "W_gate": _w((lambda *s: torch.randn(*s, dtype=torch.bfloat16) * 0.4)(D, F) * (2.0 / D) ** 0.5),
            "W_up": _w((lambda *s: torch.randn(*s, dtype=torch.bfloat16) * 0.4)(D, F) * (2.0 / D) ** 0.5),
            "W_down": _w((lambda *s: torch.randn(*s, dtype=torch.bfloat16) * 0.4)(F, D) * (1.0 / F) ** 0.5),
        }
    _B_in = _B_setup()

    return {
        "A_x": _A_in["x"],
        "A_wqkv": _A_in["wqkv"],
        "A_w_phi": _A_in["w_phi"],
        "A_wo": _A_in["wo"],
        "B_x": _B_in["x"],
        "B_W_gate": _B_in["W_gate"],
        "B_W_up": _B_in["W_up"],
        "B_W_down": _B_in["W_down"],
    }

def reference(A_x, A_wqkv, A_w_phi, A_wo, B_x, B_W_gate, B_W_up, B_W_down):
    def _A_ref(x, wqkv, w_phi, wo):
        B, S, D = x.shape
        H = 32; Dh = D // H
        qkv = (lambda x, *d: x.permute(*d))((x @ wqkv).reshape(B, S, 3, H, Dh), 2, 0, 3, 1, 4)
        q, k, v = qkv[0], qkv[1], qkv[2]
        pq = torch.einsum("bhsd,hdf->bhsf", q, w_phi)
        pk = torch.einsum("bhsd,hdf->bhsf", k, w_phi)
        phi_q = torch.concatenate([_softmax(pq, axis=-1), _softmax(-pq, axis=-1)], axis=-1)
        phi_k = torch.concatenate([_softmax(pk, axis=-1), _softmax(-pk, axis=-1)], axis=-1)
        kv = torch.einsum("bhsf,bhsd->bhfd", phi_k, v)
        z  = torch.einsum("bhsf->bhf", phi_k)
        num = torch.einsum("bhqf,bhfd->bhqd", phi_q, kv)
        den = torch.einsum("bhqf,bhf->bhq", phi_q, z)[..., None] + 1e-6
        o = num / den
        return (lambda x, *d: x.permute(*d))(o, 0, 2, 1, 3).reshape(B, S, D) @ wo

    def _B_ref(x, W_gate, W_up, W_down):
        gate = torch.einsum("bsd,df->bsf", x, W_gate)
        up = torch.einsum("bsd,df->bsf", x, W_up)
        gate = gate * (lambda x, dt: x.to(dt))(gate > 0, gate.dtype)
        h = gate * up
        return torch.einsum("bsf,fd->bsd", h, W_down)

    x = A_x
    h = x + _A_ref(_layernorm(x, axis=-1), A_wqkv, A_w_phi, A_wo)
    h2 = h + _B_ref(_layernorm(h, axis=-1), B_W_gate, B_W_up, B_W_down)
    return h2
```

```python
KN = "sequential_preLN__linear_kernel_hedgehog__glu_gated_reglu__prompt_kernel"

def vr(b, n=1):
    return f"v{b}" if n == 1 else f"v[{b}:{b+n-1}]"
def ar(b, n=1):
    return f"a{b}" if n == 1 else f"a[{b}:{b+n-1}]"
def sr(b, n=1):
    return f"s{b}" if n == 1 else f"s[{b}:{b+n-1}]"

class R:
    def __init__(self, kind, base, n=1):
        self.kind, self.base, self.n = kind, base, n
    def __getitem__(self, i):
        if isinstance(i, slice):
            st = i.start or 0
            en = i.stop if i.stop is not None else self.n
            assert 0 <= st < en <= self.n, (self, i)
            return R(self.kind, self.base + st, en - st)
        assert 0 <= i < self.n, (self, i)
        return R(self.kind, self.base + i, 1)
    def sub(self, off, n):
        assert off >= 0 and off + n <= self.n, (self, off, n)
        return R(self.kind, self.base + off, n)
    def __str__(self):
        if self.n == 1:
            return f"{self.kind}{self.base}"
        return f"{self.kind}[{self.base}:{self.base+self.n-1}]"
    __repr__ = __str__

class Alloc:
    def __init__(self, kind, start, limit):
        self.kind, self.next, self.limit = kind, start, limit
        self.hi = start
        self.names = {}
    def __call__(self, n=1, align=1, name=None):
        b = (self.next + align - 1) // align * align
        assert b + n <= self.limit, f"out of {self.kind} regs allocating {name} n={n} at {b}"
        self.next = b + n
        self.hi = max(self.hi, self.next)
        r = R(self.kind, b, n)
        if name: self.names[name] = r
        return r
    def mark(self): return self.next
    def release(self, m): self.next = m

class Asm:
    def __init__(self):
        self.lines = []
        self.uid = 0
    def __call__(self, s=""):
        for l in s.split("\n"):
            l = l.strip()
            if l: self.lines.append("    " + l)
    def label(self, name):
        self.lines.append(name + ":")
    def newlabel(self, stem):
        self.uid += 1
        return f"L_{stem}_{self.uid}"
    def comment(self, s):
        self.lines.append("    ; " + s)
    def raw(self, s):
        self.lines.append(s)
    def text(self):
        return "\n".join(self.lines) + "\n"

def header(launch_lines, comments=()):
    s = ""
    for c in comments: s += "; " + c + "\n"
    for l in launch_lines: s += l + "\n"
    s += '.amdgcn_target "amdgcn-amd-amdhsa--gfx950"\n.text\n'
    return s

def kernel_begin(name):
    return f".globl {name}\n.p2align 8\n.type {name},@function\n{name}:\n"

def kernel_desc(name, nvgpr, nsgpr, accum_offset):
    return f""".section .rodata,"a"
.p2align 6
.amdhsa_kernel {name}
  .amdhsa_next_free_vgpr {nvgpr}
  .amdhsa_next_free_sgpr {nsgpr}
  .amdhsa_accum_offset {accum_offset}
  .amdhsa_group_segment_fixed_size 0
  .amdhsa_kernarg_size 88
  .amdhsa_user_sgpr_count 2
  .amdhsa_user_sgpr_kernarg_segment_ptr 1
  .amdhsa_system_sgpr_workgroup_id_x 1
.end_amdhsa_kernel
.text
"""
```

```python
from asmlib import *
from gen import *
import gen as G

SEL_LO = 0x00003f80
SEL_HI = 0x3f800000
ONES2  = 0x3f803f80

P1_SLOT = 32768
T0_OFF  = 102400
T1_OFF  = 118784
VT_OFF  = 135168
KVX_OFF = 102400
OT_OFF  = 122880
OTJ_OFF = OT_OFF + 10240
CS_OFF  = 161792

def capture(g, fn):
    old = g.a
    g.a = Asm(); g.a.uid = old.uid
    fn()
    lines = g.a.lines
    old.uid = g.a.uid
    g.a = old
    return lines

def interleave(g, main, extra, every, start=0):
    extra = list(extra); n = 0
    for l in main:
        g.a.lines.append(l)
        s = l.strip()
        if s and not s.endswith(":") and not s.startswith(";"):
            n += 1
            if n >= start and (n - start) % every == 0 and extra:
                for e in extra.pop(0): g.a(e)
    for grp in extra:
        for e in grp: g.a(e)

def p1(g):
    a, S, V, A = g.a, g.S, g.V, g.A
    st, vt, vl = g.s_t, g.v_t, g.v_l
    s_hw = S(); s_wsr = S(); g.s_hw, g.s_wsr = s_hw, s_wsr
    s_m0x = S(); s_m0w = S(); s_sel_lo = S(); s_sel_hi = S(); g.s_sel_lo, g.s_sel_hi = s_sel_lo, s_sel_hi
    a(f"s_and_b32 {s_hw}, {g.s_w}, 1")
    a(f"s_lshr_b32 {s_wsr}, {g.s_w}, 1")
    a(f"s_mov_b32 {s_sel_lo}, {SEL_LO:#x}")
    a(f"s_mov_b32 {s_sel_hi}, {SEL_HI:#x}")
    phi0 = V(4, 2); phi1q = V(4, 2); phi1k = V(4, 2)
    g.phiq = [V(12, 2), V(12, 2)]
    g.v_wr = V(5)
    g.s_wm0 = S(); g.s_wso = S()
    mark = V.mark()
    acc = V(64, 4)
    blk = V(64, 4)
    stt = [V(2, 2), V(2, 2)]
    mark_loop = V.mark()
    a(f"s_or_b32 {st[0]}, s2, {g.s_w}")
    a(f"s_cmp_eq_u32 {st[0]}, 0")
    a(f"s_cselect_b32 {st[0]}, {CNT_OFF}, {OOB:#x}")
    a(f"v_lshlrev_b32 {vt[0]}, 8, {vl}")
    a(f"v_add_u32 {vt[0]}, {st[0]}, {vt[0]}")
    a(f"v_add_u32 {vt[1]}, 16384, {vt[0]}")
    a(f"v_mov_b32 {vt[2]}, 0")
    a(f"buffer_store_dword {vt[2]}, {vt[0]}, {g.r_ws}, 0 offen sc1"); g.vm.add("zero")
    a(f"buffer_store_dword {vt[2]}, {vt[1]}, {g.r_ws}, 0 offen sc1"); g.vm.add("zero")
    v_dx = V(4); v_dw = V(4)
    a(f"s_lshl_b32 {st[0]}, {g.s_rb}, 7")
    a(f"s_lshl_b32 {st[1]}, {g.s_w}, 5")
    a(f"s_add_u32 {st[0]}, {st[0]}, {st[1]}")
    a(f"v_lshrrev_b32 {vt[0]}, 3, {vl}")
    a(f"v_add_u32 {vt[0]}, {st[0]}, {vt[0]}")
    a(f"v_mul_u32_u24 {vt[0]}, 1280, {vt[0]}")
    a(f"v_lshrrev_b32 {vt[1]}, 4, {vl}")
    a(f"v_and_b32 {vt[2]}, 7, {vl}")
    a(f"v_xor_b32 {vt[3]}, {vt[1]}, {vt[2]}")
    a(f"v_xor_b32 {vt[4]}, 4, {vt[3]}")
    for ii in range(4):
        a(f"v_lshl_add_u32 {v_dx[ii]}, {vt[3 + (ii & 1)]}, 4, {vt[0]}")
        if ii: a(f"v_add_u32 {v_dx[ii]}, {ii*(8*1280 - 1024)}, {v_dx[ii]}")
    a(f"s_lshl_b32 {st[0]}, {g.s_w}, 4")
    a(f"v_add_u32 {vt[0]}, {st[0]}, {vt[1]}")
    a(f"v_mul_u32_u24 {vt[0]}, 3840, {vt[0]}")
    a(f"v_and_b32 {vt[2]}, 15, {vl}")
    a(f"v_lshlrev_b32 {vt[3]}, 2, {vt[1]}")
    a(f"v_xor_b32 {vt[3]}, {vt[3]}, {vt[2]}")
    def seg_of(dst, c, tmp):
        a(f"v_lshlrev_b32 {dst}, 4, {c}")
        a(f"v_cmp_le_u32 vcc, 5, {c}")
        a(f"v_add_u32 {tmp}, 1192, {dst}")
        a(f"v_cndmask_b32 {dst}, {dst}, {tmp}, vcc")
        a(f"v_cmp_le_u32 vcc, 11, {c}")
        a(f"v_add_u32 {tmp}, 1192, {dst}")
        a(f"v_cndmask_b32 {dst}, {dst}, {tmp}, vcc")
    seg_of(vt[4], vt[3], vt[5])
    a(f"s_mul_i32 {st[1]}, {g.s_j}, 80")
    a(f"v_add3_u32 {v_dw[0]}, {vt[0]}, {vt[4]}, {st[1]}")
    for ii in range(1, 4):
        a(f"v_add_u32 {v_dw[ii]}, {ii*(4*3840 - 1024)}, {v_dw[0]}")
    a(f"s_lshl_b32 {s_m0x}, {g.s_w}, 12")
    a(f"s_add_u32 {s_m0w}, {s_m0x}, 16384")
    def dma_stage(stg):
        slot = stg % 4
        L = [[f"s_mov_b32 {g.s_so}, {stg*128}", f"s_add_u32 m0, {s_m0x}, {slot*P1_SLOT}",
              f"buffer_load_dwordx4 {v_dx[0]}, {g.r_x}, {g.s_so} offen lds"]]
        for ii in range(1, 4):
            L.append([f"buffer_load_dwordx4 {v_dx[ii]}, {g.r_x}, {g.s_so} offen offset:{1024*ii} lds"])
        L.append([f"s_mov_b32 {g.s_so2}, {stg*64*3840}", f"s_add_u32 m0, {s_m0w}, {slot*P1_SLOT}",
                  f"buffer_load_dwordx4 {v_dw[0]}, {g.r_wqkv}, {g.s_so2} offen lds"])
        for ii in range(1, 4):
            L.append([f"buffer_load_dwordx4 {v_dw[ii]}, {g.r_wqkv}, {g.s_so2} offen offset:{1024*ii} lds"])
        return L
    def issue_stage(stg):
        for grp in dma_stage(stg):
            for l in grp: a(l)
            g.vm.add(("d", stg))
    issue_stage(0)
    sd = acc.sub(0, 40)
    v_s0o = V()
    L_stats = a.newlabel("stats"); L_ld = a.newlabel("s0ld"); L_g = a.newlabel("s0g"); L_u = a.newlabel("s0u")
    a(f"s_cmp_eq_u32 {g.s_w}, 0")
    a(f"s_cbranch_scc1 {L_stats}")
    a(f"s_mul_i32 {st[0]}, {g.s_rb}, 40")
    a(f"v_add_u32 {vt[0]}, {st[0]}, {vt[1]}")
    a(f"s_lshl_b32 {st[2]}, {g.s_j}, 4")
    a(f"s_add_u32 {st[2]}, {st[2]}, {g.s_rb}")
    a(f"v_lshlrev_b32 {vt[6]}, 5, {vt[2]}")
    a(f"v_cmp_eq_u32 vcc, 0, {vt[1]}")
    a(f"v_mov_b32 {vt[7]}, {OOB:#x}")
    a(f"v_cndmask_b32 {vt[6]}, {vt[7]}, {vt[6]}, vcc")
    a(f"s_cmp_eq_u32 {g.s_w}, 1")
    a(f"s_cbranch_scc0 {L_g}")
    seg_of(vt[4], vt[2], vt[5])
    a(f"v_mul_u32_u24 {vt[0]}, 3840, {vt[0]}")
    a(f"s_mul_i32 {st[1]}, {g.s_j}, 80")
    a(f"v_add3_u32 {vt[0]}, {vt[0]}, {vt[4]}, {st[1]}")
    for i in range(10):
        a(f"s_mov_b32 {g.s_so}, {i*4*3840}")
        a(f"buffer_load_dwordx4 {sd.sub(4*i,4)}, {vt[0]}, {g.r_wqkv}, {g.s_so} offen")
    a(f"s_lshl_b32 {st[2]}, {st[2]}, 9")
    a(f"s_add_u32 {st[2]}, {st[2]}, {CSQ_OFF}")
    a(f"v_add_u32 {v_s0o}, {st[2]}, {vt[6]}")
    a(f"s_branch {L_ld}")
    a.label(L_g)
    a(f"v_mul_u32_u24 {vt[0]}, 3072, {vt[0]}")
    a(f"s_mul_i32 {st[1]}, {g.s_j}, 192")
    a(f"v_lshlrev_b32 {vt[4]}, 4, {vt[2]}")
    a(f"v_add3_u32 {vt[0]}, {vt[0]}, {vt[4]}, {st[1]}")
    a(f"v_cmp_gt_u32 vcc, 12, {vt[2]}")
    a(f"v_cndmask_b32 {vt[0]}, {vt[7]}, {vt[0]}, vcc")
    a(f"s_lshl_b32 {st[2]}, {st[2]}, 1")
    a(f"s_add_u32 {st[2]}, {st[2]}, {g.s_w}")
    a(f"s_sub_u32 {st[2]}, {st[2]}, 2")
    a(f"s_lshl_b32 {st[2]}, {st[2]}, 9")
    a(f"s_add_u32 {st[2]}, {st[2]}, {CSGU_OFF}")
    a(f"v_add_u32 {v_s0o}, {st[2]}, {vt[6]}")
    a(f"s_cmp_eq_u32 {g.s_w}, 2")
    a(f"s_cbranch_scc0 {L_u}")
    for i in range(10):
        a(f"s_mov_b32 {g.s_so}, {i*4*3072}")
        a(f"buffer_load_dwordx4 {sd.sub(4*i,4)}, {vt[0]}, {g.r_wg}, {g.s_so} offen")
    a(f"s_branch {L_ld}")
    a.label(L_u)
    for i in range(10):
        a(f"s_mov_b32 {g.s_so}, {i*4*3072}")
        a(f"buffer_load_dwordx4 {sd.sub(4*i,4)}, {vt[0]}, {g.r_wu}, {g.s_so} offen")
    a(f"s_branch {L_ld}")
    a.label(L_stats)
    a(f"s_lshl_b32 {st[0]}, {g.s_rb}, 7")
    a(f"s_lshl_b32 {st[1]}, {g.s_j}, 3")
    a(f"s_add_u32 {st[0]}, {st[0]}, {st[1]}")
    a(f"v_lshrrev_b32 {vt[0]}, 3, {vl}")
    a(f"v_add_u32 {vt[0]}, {st[0]}, {vt[0]}")
    a(f"v_and_b32 {vt[2]}, 7, {vl}")
    a(f"v_lshlrev_b32 {vt[4]}, 3, {vt[0]}")
    a(f"v_add_u32 {vt[4]}, {STATX_OFF}, {vt[4]}")
    a(f"v_mov_b32 {vt[7]}, {OOB:#x}")
    a(f"v_cmp_eq_u32 vcc, 0, {vt[2]}")
    a(f"v_cndmask_b32 {v_s0o}, {vt[7]}, {vt[4]}, vcc")
    a(f"v_mul_u32_u24 {vt[0]}, 1280, {vt[0]}")
    a(f"v_lshl_add_u32 {vt[0]}, {vt[2]}, 4, {vt[0]}")
    for i in range(10):
        a(f"buffer_load_dwordx4 {sd.sub(4*i,4)}, {vt[0]}, {g.r_x}, 0 offen offset:{128*i}")
    a.label(L_ld)
    g.vm.add("s0ld", 10)
    issue_stage(1); issue_stage(2)
    ptmp = blk.sub(0, 12)
    v_pb = V(2)
    a(f"v_and_b32 {vt[0]}, 31, {vl}")
    a(f"v_lshrrev_b32 {vt[1]}, 3, {vt[0]}")
    a(f"v_and_b32 {vt[2]}, 3, {vt[0]}")
    a(f"v_lshl_add_u32 {vt[1]}, {vt[1]}, 2, {vt[2]}")
    a(f"v_bfe_u32 {vt[2]}, {vt[0]}, 2, 1")
    a(f"v_mul_u32_u24 {vt[2]}, 10, {vt[2]}")
    a(f"v_add_u32 {vt[2]}, {vt[2]}, {vt[1]}")
    a(f"s_lshl_b32 {st[0]}, {g.s_j}, 1")
    a(f"s_add_u32 {st[0]}, {st[0]}, {s_hw}")
    a(f"s_mul_i32 {st[0]}, {st[0]}, 800")
    a(f"v_lshl_add_u32 {vt[2]}, {vt[2]}, 1, {st[0]}")
    a(f"v_cmp_gt_u32 vcc, 10, {vt[1]}")
    a(f"v_mov_b32 {vt[7]}, {OOB:#x}")
    a(f"v_cndmask_b32 {v_pb[1]}, {vt[7]}, {vt[2]}, vcc")
    a(f"v_lshrrev_b32 {vt[3]}, 5, {vl}")
    a(f"v_mul_u32_u24 {vt[3]}, 160, {vt[3]}")
    a(f"v_add_u32 {vt[2]}, {vt[2]}, {vt[3]}")
    a(f"v_cndmask_b32 {v_pb[0]}, {vt[7]}, {vt[2]}, vcc")
    for jj in range(8):
        d = jj + (4 if jj >= 4 else 0)
        op = "buffer_load_ushort" if jj % 2 == 0 else "buffer_load_short_d16_hi"
        a(f"{op} {ptmp[jj]}, {v_pb[0]}, {g.r_wphi}, 0 offen offset:{40*d}")
    for jj in range(4):
        op = "buffer_load_ushort" if jj % 2 == 0 else "buffer_load_short_d16_hi"
        a(f"{op} {ptmp[8+jj]}, {v_pb[1]}, {g.r_wphi}, 0 offen offset:{40*(16+jj)}")
    g.vm.add("phi", 12)
    g.wait(g.vm.count_after("zero"))
    a(f"s_or_b32 {st[0]}, s2, {g.s_w}")
    a(f"s_cmp_eq_u32 {st[0]}, 0")
    a(f"s_cselect_b32 {st[0]}, 0, {OOB:#x}")
    a(f"v_mov_b32 {vt[0]}, {st[0]}")
    a(f"v_mov_b32 {vt[1]}, 1")
    a("s_mov_b64 exec, 1")
    a(f"buffer_store_dword {vt[1]}, {vt[0]}, {g.r_dbg}, 0 offen sc1"); g.vm.add("flagst")
    a("s_mov_b64 exec, -1")
    L_st2 = a.newlabel("st2"); L_s0e = a.newlabel("s0e")
    g.waitvm("s0ld")
    a(f"s_cmp_eq_u32 {g.s_w}, 0")
    a(f"s_cbranch_scc1 {L_st2}")
    cs8 = blk.sub(16, 8); ct8 = blk.sub(24, 8)
    for e in range(8): a(f"v_mov_b32 {cs8[e]}, 0")
    for i in range(10):
        for w in range(4):
            a(f"v_dot2c_f32_bf16 {cs8[2*w]}, {s_sel_lo}, {sd[4*i+w]}")
            a(f"v_dot2c_f32_bf16 {cs8[2*w+1]}, {s_sel_hi}, {sd[4*i+w]}")
    for sw in ("v_permlane32_swap_b32", "v_permlane16_swap_b32"):
        for e in range(8): a(f"v_mov_b32 {ct8[e]}, {cs8[e]}")
        for e in range(8): a(f"{sw} {ct8[e]}, {cs8[e]}")
        for e in range(8): a(f"v_add_f32 {cs8[e]}, {cs8[e]}, {ct8[e]}")
    a(f"buffer_store_dwordx4 {cs8.sub(0,4)}, {v_s0o}, {g.r_ws}, 0 offen sc1")
    a(f"buffer_store_dwordx4 {cs8.sub(4,4)}, {v_s0o}, {g.r_ws}, 0 offen offset:16 sc1")
    a(f"s_branch {L_s0e}")
    a.label(L_st2)
    s_ones = st[4]
    a(f"s_mov_b32 {s_ones}, {ONES2:#x}")
    for e in range(4): a(f"v_mov_b32 {cs8[e]}, 0")
    for i in range(40):
        a(f"v_dot2c_f32_bf16 {cs8[i%2]}, {s_ones}, {sd[i]}")
        a(f"v_dot2c_f32_bf16 {cs8[2+i%2]}, {sd[i]}, {sd[i]}")
    a(f"v_add_f32 {cs8[0]}, {cs8[0]}, {cs8[1]}")
    a(f"v_add_f32 {cs8[2]}, {cs8[2]}, {cs8[3]}")
    for ctl in ("quad_perm:[1,0,3,2]", "quad_perm:[2,3,0,1]", "row_half_mirror"):
        a(f"v_add_f32_dpp {cs8[0]}, {cs8[0]}, {cs8[0]} {ctl} row_mask:0xf bank_mask:0xf")
        a(f"v_add_f32_dpp {cs8[2]}, {cs8[2]}, {cs8[2]} {ctl} row_mask:0xf bank_mask:0xf")
    a(f"v_mul_f32 {cs8[0]}, {f32hex(1/640)}, {cs8[0]}")
    a(f"v_mul_f32 {cs8[2]}, {f32hex(1/640)}, {cs8[2]}")
    a(f"v_fma_f32 {cs8[2]}, -{cs8[0]}, {cs8[0]}, {cs8[2]}")
    a(f"v_max_f32 {cs8[2]}, 0, {cs8[2]}")
    a(f"v_add_f32 {cs8[2]}, {f32hex(1e-5)}, {cs8[2]}")
    a(f"v_rsq_f32 {cs8[1]}, {cs8[2]}")
    a(f"buffer_store_dword {cs8[0]}, {v_s0o}, {g.r_ws}, 0 offen sc1")
    a(f"buffer_store_dword {cs8[1]}, {v_s0o}, {g.r_ws}, 0 offen offset:4 sc1")
    a.label(L_s0e)
    g.vm.add("s0st", 2)
    v_flag = V()
    a(f"v_mov_b32 {vt[0]}, 0")
    a(f"buffer_load_dword {v_flag}, {vt[0]}, {g.r_dbg}, 0 offen sc1"); g.vm.add("flagld")
    issue_stage(3)
    g.wait(g.vm.count_after("phi"))
    for q in range(4): a(f"v_or_b32 {phi0[q]}, {ptmp[2*q]}, {ptmp[2*q+1]}")
    a(f"v_or_b32 {ptmp[8]}, {ptmp[8]}, {ptmp[9]}")
    a(f"v_or_b32 {ptmp[9]}, {ptmp[10]}, {ptmp[11]}")
    a(f"v_cmp_gt_u32 vcc, 32, {vl}")
    for q in range(2):
        a(f"v_cndmask_b32 {phi1q[q]}, 0, {ptmp[8+q]}, vcc")
        a(f"v_cndmask_b32 {phi1k[q]}, {ptmp[8+q]}, 0, vcc") if False else None
    a(f"v_cmp_le_u32 vcc, 32, {vl}")
    for q in range(2):
        a(f"v_cndmask_b32 {phi1k[q]}, 0, {ptmp[8+q]}, vcc")
    for q in range(2, 4):
        a(f"v_mov_b32 {phi1q[q]}, 0"); a(f"v_mov_b32 {phi1k[q]}, 0")
    v_bx = [V(4), V(4)]; v_aw = [V(2), V(2)]
    a(f"v_and_b32 {vt[0]}, 31, {vl}")
    a(f"s_lshl_b32 {st[0]}, {s_wsr}, 6")
    a(f"v_add_u32 {vt[1]}, {st[0]}, {vt[0]}")
    a(f"v_lshlrev_b32 {vt[1]}, 7, {vt[1]}")
    a(f"v_bfe_u32 {vt[2]}, {vl}, 1, 3")
    a(f"v_lshrrev_b32 {vt[3]}, 5, {vl}")
    a(f"v_xor_b32 {vt[2]}, {vt[2]}, {vt[3]}")
    for u in range(4):
        a(f"v_xor_b32 {vt[4]}, {2*u}, {vt[2]}")
        a(f"v_lshl_add_u32 {v_bx[0][u]}, {vt[4]}, 4, {vt[1]}")
        a(f"v_add_u32 {v_bx[1][u]}, 65536, {v_bx[0][u]}")
    a(f"v_lshrrev_b32 {vt[0]}, 5, {vl}")
    a(f"v_bfe_u32 {vt[1]}, {vl}, 2, 2")
    a(f"v_lshl_add_u32 {vt[0]}, {vt[0]}, 3, {vt[1]}")
    a(f"v_lshlrev_b32 {vt[0]}, 8, {vt[0]}")
    a(f"v_add_u32 {vt[0]}, 16384, {vt[0]}")
    a(f"v_and_b32 {vt[2]}, 3, {vl}")
    a(f"v_bfe_u32 {vt[3]}, {vl}, 4, 1")
    a(f"s_mul_i32 {st[0]}, {s_hw}, 5")
    a(f"v_lshlrev_b32 {vt[4]}, 3, {vt[2]}")
    a(f"s_mov_b32 {st[1]}, 0x16160f04")
    a(f"v_lshrrev_b32 {vt[4]}, {vt[4]}, {st[1]}") if False else a(f"v_lshrrev_b32_e64 {vt[4]}, {vt[4]}, {st[1]}")
    a(f"v_and_b32 {vt[4]}, 0xff, {vt[4]}")
    a(f"v_cmp_eq_u32 vcc, 1, {vt[3]}")
    a(f"v_cndmask_b32 {vt[4]}, {vt[2]}, {vt[4]}, vcc")
    a(f"v_add_u32 {vt[4]}, {st[0]}, {vt[4]}")
    a(f"v_mul_u32_u24 {vt[5]}, 12, {vt[3]}")
    a(f"v_add3_u32 {vt[5]}, {vt[5]}, {vt[2]}, {st[0]}")
    a(f"v_add_u32 {vt[5]}, 11, {vt[5]}")
    a(f"v_lshlrev_b32 {vt[6]}, 3, {vt[1]}")
    for nb in range(2):
        a(f"v_xor_b32 {vt[7]}, {vt[4+nb]}, {vt[6]}")
        a(f"v_lshl_add_u32 {v_aw[0][nb]}, {vt[7]}, 3, {vt[0]}")
        a(f"v_add_u32 {v_aw[1][nb]}, 65536, {v_aw[0][nb]}")
    fa = [blk.sub(0, 8), blk.sub(8, 8)]; fb = [blk.sub(16, 8), blk.sub(24, 8)]
    for i in range(64): a(f"v_mov_b32 {acc[i]}, 0")
    def ACC(nb, sb): return acc.sub(16*(2*nb+sb), 16)
    def reads(t):
        stg, u = t >> 2, t & 3
        slot = stg % 4; grp, sl = slot >> 1, slot & 1
        p = t & 1
        def ra(nb, th): return f"ds_read_b64_tr_b16 {fa[p].sub(4*nb+2*th,2)}, {v_aw[grp][nb]} offset:{sl*P1_SLOT + (16*u+4*th)*256}"
        def rbx(sb): return f"ds_read_b128 {fb[p].sub(4*sb,4)}, {v_bx[grp][u]} offset:{sl*P1_SLOT + sb*4096}"
        return [ra(0,0), ra(0,1), rbx(0), rbx(1), ra(1,0), ra(1,1)]
    g.stamp("p1_pro")
    g.waitvm(("d", 0))
    a("s_barrier")
    g.stamp("p1_first")
    for l in reads(0): a(l)
    v_cnt = V(2); v_cadr = V(2)
    csl = blk.sub(32, 32)
    v_sta = V(); v_csa = V()
    pend = []
    for t in range(40):
        stg, u = t >> 2, t & 3
        p = t & 1
        bar = (u == 1 and stg + 1 < 10)
        vmn = None
        if bar:
            vmn = g.vm.wait(("d", stg+1))
        rd = reads(t+1) if t + 1 < 40 else []
        if bar and stg >= 1 and stg + 3 < 10:
            pend += [(grp, ("d", stg+3)) for grp in dma_stage(stg+3)]
        order = [(0,0),(0,1),(1,0),(1,1)]
        for m, (nb, sb) in enumerate(order):
            if m == 0:
                g.wait(vmn, 3)
                if bar:
                    a("s_barrier")
                    if stg == 2:
                        l = a.newlabel("s0sig"); lp = a.newlabel("s0fl"); lo = a.newlabel("s0ok")
                        a(f"s_cmp_lg_u32 {g.s_w}, 0")
                        a(f"s_cbranch_scc1 {l}")
                        a(f"v_readfirstlane_b32 {st[0]}, {v_flag}")
                        a(f"s_mov_b32 {g.s_cnt}, 0")
                        a(f"s_cmp_eq_u32 {st[0]}, 1")
                        a(f"s_cbranch_scc1 {lo}")
                        a.label(lp)
                        a(f"v_mov_b32 {vt[0]}, 0")
                        a(f"buffer_load_dword {v_flag}, {vt[0]}, {g.r_dbg}, 0 offen sc1")
                        a("s_waitcnt vmcnt(0)")
                        a(f"v_readfirstlane_b32 {st[0]}, {v_flag}")
                        a(f"s_add_u32 {g.s_cnt}, {g.s_cnt}, 1")
                        a(f"s_cmp_eq_u32 {st[0]}, 1")
                        a(f"s_cbranch_scc1 {lo}")
                        a(f"s_cmp_lt_u32 {g.s_cnt}, 200000")
                        a(f"s_cbranch_scc1 {lp}")
                        a.label(lo)
                        a(f"s_lshl_b32 {st[0]}, {g.s_rb}, 8")
                        a(f"s_add_u32 {st[0]}, {st[0]}, {CNT_OFF + S0R*4096}")
                        a(f"s_lshl_b32 {st[1]}, {g.s_j}, 8")
                        a(f"s_add_u32 {st[1]}, {st[1]}, {CNT_OFF + S0C*4096}")
                        a(f"v_mov_b32 {vt[0]}, {st[0]}")
                        a(f"v_mov_b32 {vt[1]}, {st[1]}")
                        a(f"v_mov_b32 {vt[2]}, 1")
                        a("s_mov_b64 exec, 1")
                        a(f"buffer_atomic_add {vt[2]}, {vt[0]}, {g.r_ws}, 0 offen sc1")
                        a(f"buffer_atomic_add {vt[2]}, {vt[1]}, {g.r_ws}, 0 offen sc1")
                        a("s_mov_b64 exec, -1")
                        a.label(l)
            elif m == 1 and t + 1 < 40:
                g.wait(None, 3)
            elif m == 1:
                g.wait(None, 0)
            a(f"v_mfma_f32_32x32x16_bf16 {ACC(nb,sb)}, {fa[p].sub(4*nb,4)}, {fb[p].sub(4*sb,4)}, {ACC(nb,sb)}")
            if m < 2:
                for l in rd[3*m:3*m+3]: a(l)
            else:
                if pend:
                    grp, tag = pend.pop(0)
                    for l in grp: a(l)
                    g.vm.add(tag)
        if t == 28:
            a(f"s_lshl_b32 {st[0]}, {g.s_rb}, 8")
            a(f"s_add_u32 {st[0]}, {st[0]}, {CNT_OFF + S0R*4096}")
            a(f"s_lshl_b32 {st[1]}, {g.s_j}, 8")
            a(f"s_add_u32 {st[1]}, {st[1]}, {CNT_OFF + S0C*4096}")
            a(f"v_mov_b32 {v_cadr[0]}, {st[0]}")
            a(f"v_mov_b32 {v_cadr[1]}, {st[1]}")
            a(f"buffer_load_dword {v_cnt[0]}, {v_cadr[0]}, {g.r_ws}, 0 offen sc1")
            a(f"buffer_load_dword {v_cnt[1]}, {v_cadr[1]}, {g.r_ws}, 0 offen sc1")
            g.vm.add("s0cnt", 2)
        if t == 33:
            lp = a.newlabel("s0w"); lo = a.newlabel("s0wd")
            g.waitvm("s0cnt")
            a(f"s_mov_b32 {g.s_cnt}, 0")
            a.label(lp)
            a(f"v_min_u32 {vt[0]}, {v_cnt[0]}, {v_cnt[1]}")
            a(f"s_add_u32 {g.s_cnt}, {g.s_cnt}, 1")
            a(f"v_readfirstlane_b32 {st[0]}, {vt[0]}")
            a(f"s_cmp_ge_u32 {st[0]}, 16")
            a(f"s_cbranch_scc1 {lo}")
            a(f"buffer_load_dword {v_cnt[0]}, {v_cadr[0]}, {g.r_ws}, 0 offen sc1")
            a(f"buffer_load_dword {v_cnt[1]}, {v_cadr[1]}, {g.r_ws}, 0 offen sc1")
            a("s_waitcnt vmcnt(0)")
            a(f"s_cmp_lt_u32 {g.s_cnt}, 200000")
            a(f"s_cbranch_scc1 {lp}")
            a.label(lo)
            a(f"s_lshl_b32 {st[0]}, {g.s_rb}, 7")
            a(f"s_lshl_b32 {st[1]}, {s_wsr}, 6")
            a(f"s_add_u32 {st[0]}, {st[0]}, {st[1]}")
            a(f"v_and_b32 {v_sta}, 31, {vl}")
            a(f"v_add_u32 {v_sta}, {st[0]}, {v_sta}")
            a(f"v_lshlrev_b32 {v_sta}, 3, {v_sta}")
            a(f"v_add_u32 {v_sta}, {STATX_OFF}, {v_sta}")
            a(f"buffer_load_dwordx2 {stt[0]}, {v_sta}, {g.r_ws}, 0 offen sc1")
            a(f"buffer_load_dwordx2 {stt[1]}, {v_sta}, {g.r_ws}, 0 offen offset:256 sc1")
            a(f"s_lshl_b32 {st[0]}, {g.s_j}, 13")
            a(f"s_add_u32 {st[0]}, {st[0]}, {CSQ_OFF}")
            a(f"v_lshlrev_b32 {v_csa}, 3, {vl}")
            a(f"v_add_u32 {v_csa}, {st[0]}, {v_csa}")
            for i in range(16):
                if i == 8: a(f"v_add_u32 {v_csa}, 4096, {v_csa}")
                a(f"buffer_load_dwordx2 {csl.sub(2*i,2)}, {v_csa}, {g.r_ws}, 0 offen offset:{512*(i%8)} sc1")
            g.vm.add("s0data", 18)
    assert not pend
    g.stamp("p1_loop")
    V.release(mark_loop)
    g.waitvm("s0data")
    for k in (8, 4, 2, 1):
        for i in range(k):
            a(f"v_pk_add_f32 {csl.sub(2*i,2)}, {csl.sub(2*i,2)}, {csl.sub(2*(i+k),2)}")
    a(f"s_lshl_b32 {st[0]}, {g.s_w}, 9")
    a(f"s_add_u32 {st[0]}, {st[0]}, {CS_OFF}")
    a(f"v_lshl_add_u32 {vt[0]}, {vl}, 3, {st[0]}")
    a(f"ds_write_b64 {vt[0]}, {csl.sub(0,2)}")
    a(f"s_mul_i32 {st[1]}, {s_hw}, 80")
    a(f"s_add_u32 {st[0]}, {st[0]}, {st[1]}")
    a(f"v_lshrrev_b32 {vt[1]}, 5, {vl}")
    a(f"v_lshl_add_u32 {vt[2]}, {vt[1]}, 4, {st[0]}")
    a(f"v_mul_u32_u24 {vt[3]}, 176, {vt[1]}")
    a(f"v_add_u32 {vt[3]}, {st[0]}, {vt[3]}")
    a(f"v_mov_b32 {vt[4]}, {st[0]}")
    cs = csl
    a("s_waitcnt lgkmcnt(0)")
    csrd = [(0, 0, vt[2], 0), (0, 1, vt[2], 32), (0, 2, vt[3], 64), (0, 3, vt[4], 22*16),
            (1, 0, vt[2], 11*16), (1, 1, vt[2], 13*16), (1, 2, vt[2], 23*16), (1, 3, vt[2], 25*16)]
    for nb, rq, ad, off in csrd:
        a(f"ds_read_b128 {cs.sub(16*nb+4*rq,4)}, {ad} offset:{off}")
    nm = [V(2, 2), V(2, 2)]; sa = [V(2, 2), V(2, 2)]; rs2 = [V(2, 2), V(2, 2)]
    for sb in range(2):
        a(f"v_sub_f32 {nm[sb][0]}, 0, {stt[sb][0]}")
        a(f"v_mul_f32 {sa[sb][0]}, {f32hex(LOG2E)}, {stt[sb][1]}")
        a(f"v_sub_f32 {sa[sb][1]}, 0, {sa[sb][0]}")
        a(f"v_mov_b32 {rs2[sb][0]}, {stt[sb][1]}")
    a("s_barrier")
    a("s_waitcnt lgkmcnt(0)")
    PK = blk.sub(0, 32)
    def P(nb, sb): return PK.sub(8*(2*nb+sb), 8)
    for sb in range(2):
        for nb in range(2):
            for p in range(8):
                a(f"v_pk_fma_f32 {ACC(nb,sb).sub(2*p,2)}, {cs.sub(16*nb+2*p,2)}, {nm[sb]}, {ACC(nb,sb).sub(2*p,2)} op_sel_hi:[1,0,1]")
        for nb, p in ((1,4),(1,5),(1,6),(1,7),(0,6),(0,7)):
            a(f"v_pk_mul_f32 {ACC(nb,sb).sub(2*p,2)}, {ACC(nb,sb).sub(2*p,2)}, {rs2[sb]} op_sel_hi:[1,0]")
        for nb in range(2):
            for p in range(8):
                a(f"v_cvt_pk_bf16_f32 {P(nb,sb)[p]}, {ACC(nb,sb)[2*p]}, {ACC(nb,sb)[2*p+1]}")
    PKk = [ACC(0,0), ACC(0,1)]; PKq = [ACC(1,0), ACC(1,1)]
    for sb in range(2):
        a(f"v_mfma_f32_32x32x16_bf16 {PKk[sb]}, {phi0}, {P(1,sb).sub(0,4)}, 0")
        a(f"v_mfma_f32_32x32x16_bf16 {PKk[sb]}, {phi1k}, {P(0,sb).sub(4,4)}, {PKk[sb]}")
    for sb in range(2):
        a(f"v_mfma_f32_32x32x16_bf16 {PKq[sb]}, {phi0}, {P(0,sb).sub(0,4)}, 0")
        a(f"v_mfma_f32_32x32x16_bf16 {PKq[sb]}, {phi1q}, {P(0,sb).sub(4,4)}, {PKq[sb]}")
    v_wa = V(4)
    a(f"v_and_b32 {vt[0]}, 31, {vl}")
    a(f"s_lshl_b32 {st[0]}, {s_wsr}, 6")
    a(f"v_add_u32 {vt[1]}, {st[0]}, {vt[0]}")
    a(f"v_lshlrev_b32 {vt[1]}, 6, {vt[1]}")
    a(f"s_lshl_b32 {st[1]}, {s_hw}, 13")
    a(f"v_add_u32 {vt[1]}, {st[1]}, {vt[1]}")
    a(f"v_bfe_u32 {vt[2]}, {vl}, 1, 2")
    a(f"v_lshrrev_b32 {vt[3]}, 5, {vl}")
    def waddr(dst, unit_expr_const=None, unit_reg=None, sub_reg=None, sub_const=0):
        if unit_reg is None:
            a(f"v_xor_b32 {vt[5]}, {unit_expr_const}, {vt[2]}")
        else:
            a(f"v_xor_b32 {vt[5]}, {unit_reg}, {vt[2]}")
        a(f"v_lshl_add_u32 {dst}, {vt[5]}, 4, {vt[1]}")
        if sub_reg is not None:
            a(f"v_lshl_add_u32 {dst}, {sub_reg}, 3, {dst}")
        elif sub_const:
            a(f"v_add_u32 {dst}, {8*sub_const}, {dst}")
    v_va = V(3)
    a(f"v_xor_b32 {vt[4]}, 1, {vt[3]}")
    waddr(v_va[0], unit_reg=vt[3], sub_reg=vt[4])
    a(f"v_add_u32 {vt[6]}, 1, {vt[3]}")
    waddr(v_va[1], unit_reg=vt[6], sub_reg=vt[4])
    a(f"v_lshlrev_b32 {vt[6]}, 1, {vt[3]}")
    waddr(v_va[2], unit_reg=vt[6], sub_reg=vt[3])
    for i in range(3): a(f"v_add_u32 {v_va[i]}, {VT_OFF}, {v_va[i]}")
    for sb in range(2):
        a(f"ds_write_b64 {v_va[0]}, {P(1,sb).sub(4,2)} offset:{sb*2048}")
        a(f"ds_write_b64 {v_va[1]}, {P(1,sb).sub(6,2)} offset:{sb*2048}")
        a(f"ds_write_b64 {v_va[2]}, {P(0,sb).sub(6,2)} offset:{sb*2048}")
    ones4 = V(4, 2)
    a(f"v_mov_b32 {ones4[0]}, 0x3f80"); a(f"v_mov_b32 {ones4[1]}, 0")
    a(f"v_mov_b32 {ones4[2]}, 0x3f80"); a(f"v_mov_b32 {ones4[3]}, 0")
    a(f"v_add_u32 {vt[6]}, {st[0]}, {vl}")
    a(f"v_lshlrev_b32 {vt[6]}, 6, {vt[6]}")
    a(f"v_add_u32 {vt[6]}, {st[1]}, {vt[6]}")
    a(f"v_xor_b32 {vt[5]}, 3, {vt[2]}")
    a(f"v_lshl_add_u32 {vt[6]}, {vt[5]}, 4, {vt[6]}")
    a(f"v_add_u32 {vt[6]}, {VT_OFF}, {vt[6]}")
    a(f"ds_write_b128 {vt[6]}, {ones4}")
    v_ta = V(4)
    for t in range(4):
        waddr(v_ta[t], unit_expr_const=t, sub_reg=vt[3])
        a(f"v_add_u32 {v_ta[t]}, {T0_OFF}, {v_ta[t]}")
    tmp = blk.sub(32, 32)
    def softmax(pin, sb, out):
        M, N, T2 = tmp[0], tmp[1], tmp[2]
        ep = tmp.sub(4, 10); en = tmp.sub(14, 10); cc = tmp.sub(24, 4)
        a(f"v_max3_f32 {M}, {pin[0]}, {pin[1]}, {pin[2]}")
        a(f"v_max3_f32 {N}, -{pin[0]}, -{pin[1]}, -{pin[2]}")
        for i in (3, 5, 7):
            a(f"v_max3_f32 {M}, {M}, {pin[i]}, {pin[i+1]}")
            a(f"v_max3_f32 {N}, {N}, -{pin[i]}, -{pin[i+1]}")
        a(f"v_max_f32 {M}, {M}, {pin[9]}")
        a(f"v_max_f32_e64 {N}, {N}, -{pin[9]}")
        a(f"v_permlane32_swap_b32 {M}, {N}")
        a(f"v_max_f32 {M}, {M}, {N}")
        a(f"v_mov_b32 {N}, {M}")
        a(f"v_permlane32_swap_b32 {M}, {N}")
        a(f"v_mul_f32 {cc[0]}, {sa[sb][1]}, {M}")
        a(f"v_mul_f32 {cc[2]}, {sa[sb][1]}, {N}")
        for p in range(5):
            a(f"v_pk_fma_f32 {ep.sub(2*p,2)}, {pin.sub(2*p,2)}, {sa[sb]}, {cc.sub(0,2)} op_sel_hi:[1,0,0]")
            a(f"v_pk_fma_f32 {en.sub(2*p,2)}, {pin.sub(2*p,2)}, {sa[sb]}, {cc.sub(2,2)} op_sel:[0,1,0] op_sel_hi:[1,1,0]")
        for e in range(10):
            a(f"v_exp_f32 {ep[e]}, {ep[e]}")
            a(f"v_exp_f32 {en[e]}, {en[e]}")
        sp, sn = cc.sub(0, 2), cc.sub(2, 2)
        a(f"v_pk_add_f32 {sp}, {ep.sub(0,2)}, {ep.sub(2,2)}")
        a(f"v_pk_add_f32 {sn}, {en.sub(0,2)}, {en.sub(2,2)}")
        for p in range(2, 5):
            a(f"v_pk_add_f32 {sp}, {sp}, {ep.sub(2*p,2)}")
            a(f"v_pk_add_f32 {sn}, {sn}, {en.sub(2*p,2)}")
        a(f"v_add_f32 {M}, {sp[0]}, {sp[1]}")
        a(f"v_add_f32 {N}, {sn[0]}, {sn[1]}")
        a(f"v_permlane32_swap_b32 {M}, {N}")
        a(f"v_add_f32 {M}, {M}, {N}")
        a(f"v_mov_b32 {N}, {M}")
        a(f"v_permlane32_swap_b32 {M}, {N}")
        a(f"v_rcp_f32 {cc[0]}, {M}")
        a(f"v_rcp_f32 {cc[2]}, {N}")
        for p in range(5):
            a(f"v_pk_mul_f32 {ep.sub(2*p,2)}, {ep.sub(2*p,2)}, {cc.sub(0,2)} op_sel_hi:[1,0]")
            a(f"v_pk_mul_f32 {en.sub(2*p,2)}, {en.sub(2*p,2)}, {cc.sub(2,2)} op_sel_hi:[1,0]")
        for p in range(5):
            a(f"v_cvt_pk_bf16_f32 {out[p]}, {ep[2*p]}, {ep[2*p+1]}")
            a(f"v_cvt_pk_bf16_f32 {out[5+p]}, {en[2*p]}, {en[2*p+1]}")
    phik = V(10, 2)
    for sb in range(2):
        softmax(PKk[sb], sb, phik)
        for t in range(4):
            a(f"ds_write_b64 {v_ta[t]}, {phik.sub(2*t,2)} offset:{sb*2048}")
        a(f"ds_write_b64 {v_ta[0]}, {phik.sub(8,2)} offset:{T1_OFF - T0_OFF + sb*2048}")
    g.stamp("p1_ksm")
    a("s_waitcnt lgkmcnt(0)")
    a("s_barrier")
    v_ka = V(2); v_kb = V(2)
    a(f"v_lshrrev_b32 {vt[0]}, 5, {vl}")
    a(f"v_bfe_u32 {vt[1]}, {vl}, 2, 2")
    a(f"v_lshl_add_u32 {vt[0]}, {vt[0]}, 3, {vt[1]}")
    a(f"v_lshlrev_b32 {vt[0]}, 6, {vt[0]}")
    a(f"v_bfe_u32 {vt[2]}, {vl}, 4, 1")
    a(f"v_bfe_u32 {vt[3]}, {vl}, 1, 1")
    a(f"v_lshl_add_u32 {vt[2]}, {vt[2]}, 1, {vt[3]}")
    a(f"v_lshrrev_b32 {vt[1]}, 1, {vt[1]}")
    a(f"v_xor_b32 {vt[2]}, {vt[2]}, {vt[1]}")
    a(f"v_and_b32 {vt[3]}, 1, {vl}")
    a(f"v_lshlrev_b32 {vt[3]}, 3, {vt[3]}")
    a(f"v_add_u32 {vt[0]}, {vt[0]}, {vt[3]}")
    a(f"s_lshl_b32 {st[1]}, {s_hw}, 13")
    a(f"s_mul_i32 {st[2]}, {s_wsr}, {T1_OFF - T0_OFF}")
    a(f"s_add_u32 {st[2]}, {st[2]}, {st[1]}")
    a(f"s_add_u32 {st[2]}, {st[2]}, {T0_OFF}")
    a(f"s_add_u32 {st[1]}, {st[1]}, {VT_OFF}")
    for th in range(2):
        a(f"v_xor_b32 {vt[4]}, {2*th}, {vt[2]}")
        a(f"v_lshl_add_u32 {vt[4]}, {vt[4]}, 4, {vt[0]}")
        a(f"v_add_u32 {v_ka[th]}, {st[2]}, {vt[4]}")
        a(f"v_add_u32 {v_kb[th]}, {st[1]}, {vt[4]}")
    kf = blk
    for u in range(8):
        for th in range(2):
            a(f"ds_read_b64_tr_b16 {kf.sub(8*u+2*th,2)}, {v_ka[th]} offset:{(16*u+4*th)*64}")
            a(f"ds_read_b64_tr_b16 {kf.sub(8*u+4+2*th,2)}, {v_kb[th]} offset:{(16*u+4*th)*64}")
    KVD = PKk[0]
    for u in range(8):
        g.wait(None, min(15, 4*(7-u)))
        c = "0" if u == 0 else str(KVD)
        a(f"v_mfma_f32_32x32x16_bf16 {KVD}, {kf.sub(8*u,4)}, {kf.sub(8*u+4,4)}, {c}")
    kvp = PKk[1].sub(0, 8)
    a(f"s_lshl_b32 {st[0]}, {g.s_j}, 4")
    a(f"s_add_u32 {st[0]}, {st[0]}, {g.s_rb}")
    a(f"s_lshl_b32 {st[0]}, {st[0]}, 1")
    a(f"s_add_u32 {st[0]}, {st[0]}, {s_hw}")
    a(f"s_mul_i32 {st[0]}, {st[0]}, 2560")
    a(f"s_add_u32 {st[0]}, {st[0]}, {KVP_OFF}")
    for p in range(8):
        a(f"v_cvt_pk_bf16_f32 {kvp[p]}, {KVD[2*p]}, {KVD[2*p+1]}")
    lb = a.newlabel("kvb"); le = a.newlabel("kve")
    a(f"s_cmp_eq_u32 {s_wsr}, 0")
    a(f"s_cbranch_scc0 {lb}")
    a(f"v_lshl_add_u32 {vt[0]}, {vl}, 4, {st[0]}")
    a(f"buffer_store_dwordx4 {kvp.sub(0,4)}, {vt[0]}, {g.r_ws}, 0 offen sc1")
    a(f"buffer_store_dwordx4 {kvp.sub(4,4)}, {vt[0]}, {g.r_ws}, 0 offen offset:1024 sc1")
    a(f"s_branch {le}")
    a.label(lb)
    a(f"v_lshl_add_u32 {vt[0]}, {vl}, 3, {st[0]}")
    a(f"buffer_store_dwordx2 {kvp.sub(0,2)}, {vt[0]}, {g.r_ws}, 0 offen offset:2048 sc1")
    a.label(le)
    g.drain()
    a("s_barrier")
    g.signal(S1, g.s_j)
    g.stamp("p1_sig")
    def qsm():
        for sb in range(2):
            softmax(PKq[sb], sb, g.phiq[sb].sub(0, 10))
            g.a(f"v_mov_b32 {g.phiq[sb][10]}, 0")
            g.a(f"v_mov_b32 {g.phiq[sb][11]}, 0")
    if g.stop_after in ("p1", "p2"):
        qsm()
    else:
        wrow_setup(g, swap23=True)
        a_save = a
        def qsm2():
            nonlocal a
            a = g.a
            qsm()
            a = a_save
        main = capture(g, qsm2)
        extra = []
        for pp in range(5):
            extra += wrow_dma(g, g.r_wo, f"PER{pp}", None, period=pp)
        interleave(g, main, extra, 8, start=4)
        g.vm.add("wo", 25)
    g.stamp("p1_qsm")
    if g.dump == "p1":
        g.dump_regs([g.phiq[sb][i] for sb in range(2) for i in range(10)])
    V.release(mark)

def p2(g):
    a, S, V, A = g.a, g.S, g.V, g.A
    st, vt, vl = g.s_t, g.v_t, g.v_l
    s_hw, s_wsr = g.s_hw, g.s_wsr
    mark = V.mark()
    g.poll(S1, g.s_j)
    g.stamp("s1_done")
    gat = V(80, 4)
    va = V(2)
    a(f"s_lshl_b32 {st[0]}, {g.s_j}, 4")
    a(f"s_lshl_b32 {st[1]}, {s_wsr}, 3")
    a(f"s_add_u32 {st[0]}, {st[0]}, {st[1]}")
    a(f"s_lshl_b32 {st[0]}, {st[0]}, 1")
    a(f"s_add_u32 {st[0]}, {st[0]}, {s_hw}")
    a(f"s_mul_i32 {st[0]}, {st[0]}, 2560")
    a(f"s_add_u32 {st[0]}, {st[0]}, {KVP_OFF}")
    a(f"v_lshl_add_u32 {va[0]}, {vl}, 4, {st[0]}")
    a(f"v_lshl_add_u32 {va[1]}, {vl}, 3, {st[0]}")
    for i in range(8):
        a(f"s_mov_b32 {g.s_so}, {i*5120}")
        a(f"buffer_load_dwordx4 {gat.sub(10*i,4)}, {va[0]}, {g.r_ws}, {g.s_so} offen sc1")
        a(f"buffer_load_dwordx4 {gat.sub(10*i+4,4)}, {va[0]}, {g.r_ws}, {g.s_so} offen offset:1024 sc1")
        a(f"buffer_load_dwordx2 {gat.sub(10*i+8,2)}, {va[1]}, {g.r_ws}, {g.s_so} offen offset:2048 sc1")
        g.vm.add(("g", i), 3)
    ks = V(20, 4)
    for e in range(20): a(f"v_mov_b32 {ks[e]}, 0")
    for i in range(8):
        g.waitvm(("g", i))
        for w in range(10):
            a(f"v_dot2c_f32_bf16 {ks[2*w]}, {g.s_sel_lo}, {gat[10*i+w]}")
            a(f"v_dot2c_f32_bf16 {ks[2*w+1]}, {g.s_sel_hi}, {gat[10*i+w]}")
    a(f"s_mul_i32 {st[0]}, {g.s_w}, 5120")
    a(f"s_add_u32 {st[0]}, {st[0]}, {KVX_OFF}")
    a(f"v_lshl_add_u32 {vt[0]}, {vl}, 4, {st[0]}")
    a(f"s_xor_b32 {st[1]}, {g.s_w}, 2")
    a(f"s_mul_i32 {st[1]}, {st[1]}, 5120")
    a(f"s_add_u32 {st[1]}, {st[1]}, {KVX_OFF}")
    a(f"v_lshl_add_u32 {vt[1]}, {vl}, 4, {st[1]}")
    for q in range(5):
        a(f"ds_write_b128 {vt[0]}, {ks.sub(4*q,4)} offset:{1024*q}")
    a("s_waitcnt lgkmcnt(0)")
    a("s_barrier")
    ko = gat.sub(0, 20)
    for q in range(5):
        a(f"ds_read_b128 {ko.sub(4*q,4)}, {vt[1]} offset:{1024*q}")
    a("s_waitcnt lgkmcnt(0)")
    for p in range(10):
        a(f"v_pk_add_f32 {ks.sub(2*p,2)}, {ks.sub(2*p,2)}, {ko.sub(2*p,2)}")
    kvf = V(12, 2)
    for p in range(10):
        a(f"v_cvt_pk_bf16_f32 {kvf[p]}, {ks[2*p]}, {ks[2*p+1]}")
    a(f"v_mov_b32 {kvf[10]}, 0"); a(f"v_mov_b32 {kvf[11]}, 0")
    num = [gat.sub(32, 16), gat.sub(48, 16)]
    for sb in range(2):
        for u in range(3):
            c = "0" if u == 0 else str(num[sb])
            a(f"v_mfma_f32_32x32x16_bf16 {num[sb]}, {kvf.sub(4*u,4)}, {g.phiq[sb].sub(4*u,4)}, {c}")
    v_oa = V(2)
    a(f"v_and_b32 {vt[0]}, 31, {vl}")
    a(f"s_lshl_b32 {st[0]}, {s_wsr}, 6")
    a(f"v_add_u32 {vt[0]}, {st[0]}, {vt[0]}")
    a(f"v_mul_u32_u24 {vt[0]}, 80, {vt[0]}")
    a(f"s_mul_i32 {st[0]}, {s_hw}, 40")
    a(f"s_add_u32 {st[0]}, {st[0]}, {OT_OFF}")
    a(f"v_add_u32 {vt[0]}, {st[0]}, {vt[0]}")
    a(f"v_lshrrev_b32 {vt[1]}, 5, {vl}")
    a(f"v_lshl_add_u32 {v_oa[0]}, {vt[1]}, 3, {vt[0]}")
    a(f"v_lshlrev_b32 {vt[2]}, 3, {vl}")
    a(f"v_add_u32 {vt[2]}, {OTJ_OFF - 32}, {vt[2]}")
    a(f"v_cmp_gt_u32 vcc, 32, {vl}")
    a(f"v_cndmask_b32 {v_oa[1]}, {vt[2]}, {vt[0]}, vcc")
    op = V(6, 2)
    for sb in range(2):
        n = num[sb]
        a(f"v_add_f32 {vt[4]}, {f32hex(1e-6)}, {n[12]}")
        a(f"v_rcp_f32 {vt[4]}, {vt[4]}")
        for p in range(6):
            a(f"v_pk_mul_f32 {n.sub(2*p,2)}, {n.sub(2*p,2)}, {vt.sub(4,2)} op_sel_hi:[1,0]")
        for p in range(6):
            a(f"v_cvt_pk_bf16_f32 {op[p]}, {n[2*p]}, {n[2*p+1]}")
        a(f"ds_write_b64 {v_oa[0]}, {op.sub(0,2)} offset:{sb*32*80}")
        a(f"ds_write_b64 {v_oa[0]}, {op.sub(2,2)} offset:{sb*32*80 + 16}")
        if sb == 0:
            a(f"ds_write_b64 {v_oa[1]}, {op.sub(4,2)} offset:32")
        else:
            a(f"v_add_u32 {vt[5]}, {32*80}, {v_oa[1]}")
            a(f"v_cndmask_b32 {vt[5]}, {v_oa[1]}, {vt[5]}, vcc")
            a(f"ds_write_b64 {vt[5]}, {op.sub(4,2)} offset:32")
    a("s_waitcnt lgkmcnt(0)")
    a("s_barrier")
    od = V(12, 4); v_ra = V(3); v_ga = V(3)
    for ii in range(3):
        a(f"s_add_u32 {st[0]}, {g.s_w}, {4*ii}")
        a(f"s_lshr_b32 {st[1]}, {st[0]}, 1")
        a(f"s_and_b32 {st[2]}, {st[0]}, 1")
        a(f"s_lshl_b32 {st[2]}, {st[2]}, 6")
        a(f"v_add_u32 {vt[0]}, {st[2]}, {vl}")
        a(f"v_mul_u32_u24 {vt[1]}, 80, {vt[0]}")
        a(f"s_lshl_b32 {st[3]}, {st[1]}, 4")
        a(f"s_add_u32 {st[3]}, {st[3]}, {OT_OFF}")
        a(f"v_add_u32 {v_ra[ii]}, {st[3]}, {vt[1]}")
        a(f"s_mul_i32 {st[3]}, {g.s_j}, 5")
        a(f"s_add_u32 {st[3]}, {st[3]}, {st[1]}")
        a(f"s_lshr_b32 {st[4]}, {st[3]}, 2")
        a(f"s_lshl_b32 {st[4]}, {st[4]}, 10")
        a(f"s_and_b32 {st[3]}, {st[3]}, 3")
        a(f"s_lshl_b32 {st[3]}, {st[3]}, 8")
        a(f"s_add_u32 {st[3]}, {st[3]}, {st[4]}")
        a(f"s_mul_i32 {st[4]}, {g.s_rb}, {8*20480}")
        a(f"s_add_u32 {st[3]}, {st[3]}, {st[4]}")
        a(f"s_add_u32 {st[3]}, {st[3]}, {O_OFF}")
        a(f"s_cmp_lt_u32 {st[0]}, 10")
        a(f"s_cselect_b32 {st[3]}, {st[3]}, {OOB:#x}")
        a(f"v_lshrrev_b32 {vt[1]}, 4, {vt[0]}")
        a(f"v_mul_u32_u24 {vt[1]}, 20480, {vt[1]}")
        a(f"v_and_b32 {vt[2]}, 15, {vt[0]}")
        a(f"v_lshl_add_u32 {vt[1]}, {vt[2]}, 4, {vt[1]}")
        a(f"v_add_u32 {v_ga[ii]}, {st[3]}, {vt[1]}")
        a(f"ds_read_b128 {od.sub(4*ii,4)}, {v_ra[ii]}")
    for ii in range(3):
        g.wait(None, 2-ii)
        a(f"buffer_store_dwordx4 {od.sub(4*ii,4)}, {v_ga[ii]}, {g.r_ws}, 0 offen sc1")
    g.drain()
    a("s_barrier")
    g.signal(S2, g.s_rb)
    g.stamp("p2_sig")
    V.release(mark)

def wrow_setup(g, swap23):
    a, V = g.a, g.V
    st, vt, vl = g.s_t, g.v_t, g.v_l
    a(f"s_mov_b32 {st[0]}, 0x1999999a")
    a(f"s_mul_i32 {st[1]}, {g.s_ct}, 160")
    for m in range(5):
        a(f"v_add_u32 {vt[0]}, {64*m}, {vl}")
        a(f"v_mul_hi_u32 {vt[1]}, {vt[0]}, {st[0]}")
        a(f"v_mul_u32_u24 {vt[2]}, 10, {vt[1]}")
        a(f"v_sub_u32 {vt[2]}, {vt[0]}, {vt[2]}")
        if swap23:
            a(f"v_and_b32 {vt[3]}, 0x13, {vt[1]}")
            a(f"v_bfe_u32 {vt[4]}, {vt[1]}, 2, 1")
            a(f"v_lshl_or_b32 {vt[3]}, {vt[4]}, 3, {vt[3]}")
            a(f"v_bfe_u32 {vt[4]}, {vt[1]}, 3, 1")
            a(f"v_lshl_or_b32 {vt[1]}, {vt[4]}, 2, {vt[3]}")
        a(f"v_mul_u32_u24 {vt[1]}, 1280, {vt[1]}")
        a(f"v_lshl_add_u32 {vt[1]}, {vt[2]}, 4, {vt[1]}")
        a(f"v_add_u32 {g.v_wr[m]}, {st[1]}, {vt[1]}")
        if 1 <= m <= 3: a(f"v_subrev_u32 {g.v_wr[m]}, {1024*m}, {g.v_wr[m]}")

def wrow_dma(g, srd, tag, vmtag, period=None, so_line=None, m0_line0=None, m0_line4=None):
    out = []
    if period is not None:
        if period == 0:
            first = [f"s_mul_i32 {g.s_wso}, {g.s_w}, {5*32*1280}", f"s_mul_i32 {g.s_wm0}, {g.s_w}, {5*5120}"]
        else:
            first = [f"s_add_u32 {g.s_wso}, {g.s_wso}, {32*1280}", f"s_add_u32 {g.s_wm0}, {g.s_wm0}, 5120"]
        m0a = [f"s_mov_b32 m0, {g.s_wm0}"]; m0b = [f"s_add_u32 m0, {g.s_wm0}, 4096"]
    else:
        first = so_line; m0a = m0_line0; m0b = m0_line4
    for m in range(5):
        grp = []
        if m == 0: grp += first + m0a
        if m == 4: grp += m0b
        off = f" offset:{1024*m}" if 1 <= m <= 3 else ""
        grp.append(f"buffer_load_dwordx4 {g.v_wr[m]}, {srd}, {g.s_wso} offen{off} lds")
        out.append(grp)
    return out

def tr160_base(g, dst, extra_s=None):
    a, vt, vl = g.a, g.v_t, g.v_l
    a(f"v_lshrrev_b32 {vt[0]}, 5, {vl}")
    a(f"v_lshlrev_b32 {vt[0]}, 4, {vt[0]}")
    a(f"v_bfe_u32 {vt[1]}, {vl}, 4, 1")
    a(f"v_lshl_add_u32 {vt[0]}, {vt[1]}, 2, {vt[0]}")
    a(f"v_bfe_u32 {vt[1]}, {vl}, 2, 2")
    a(f"v_add_u32 {vt[0]}, {vt[0]}, {vt[1]}")
    a(f"v_mul_u32_u24 {vt[0]}, 160, {vt[0]}")
    a(f"v_and_b32 {vt[1]}, 3, {vl}")
    a(f"v_lshl_add_u32 {dst}, {vt[1]}, 3, {vt[0]}")
    if extra_s is not None: a(f"v_add_u32 {dst}, {extra_s}, {dst}")

def pair_store(g, src10, tmp4, addr3, srd, flags):
    a = g.a
    for i, (na, nb) in enumerate(((0, 1), (2, 3), (4, 4))):
        t = tmp4[i]
        a(f"v_mov_b32 {t[0]}, {src10[2*na]}")
        a(f"v_mov_b32 {t[1]}, {src10[2*na+1]}")
        a(f"v_mov_b32 {t[2]}, {src10[2*nb]}")
        a(f"v_mov_b32 {t[3]}, {src10[2*nb+1]}")
    for i in range(3):
        t = tmp4[i]
        a(f"v_permlane16_swap_b32 {t[0]}, {t[2]}")
        a(f"v_permlane16_swap_b32 {t[1]}, {t[3]}")
    for i in range(3):
        a(f"buffer_store_dwordx4 {tmp4[i]}, {addr3[i]}, {srd}, 0 offen{flags}")

def p3(g):
    a, S, V, A = g.a, g.S, g.V, g.A
    st, vt, vl = g.s_t, g.v_t, g.v_l
    g.hp = V(10, 2)
    mark = V.mark(); amark = A.mark()
    xr = V(10, 2)
    v_row = V()
    a(f"s_lshl_b32 {st[0]}, {g.s_rb64}, 2")
    a(f"s_add_u32 {st[0]}, {st[0]}, {g.s_w}")
    a(f"s_lshl_b32 {st[1]}, {st[0]}, 4")
    a(f"v_and_b32 {vt[0]}, 15, {vl}")
    a(f"v_add_u32 {v_row}, {st[1]}, {vt[0]}")
    a(f"v_mul_u32_u24 {vt[1]}, 1280, {v_row}")
    a(f"v_lshrrev_b32 {vt[2]}, 4, {vl}")
    a(f"v_lshl_add_u32 {vt[1]}, {vt[2]}, 3, {vt[1]}")
    a(f"s_mul_i32 {st[2]}, {g.s_ct}, 160")
    a(f"v_add_u32 {vt[1]}, {st[2]}, {vt[1]}")
    for nb in range(5):
        a(f"buffer_load_dwordx2 {xr.sub(2*nb,2)}, {vt[1]}, {g.r_x}, 0 offen offset:{32*nb}")
    g.vm.add("xres", 5)
    v_ab = V(2)
    tr160_base(g, v_ab[0])
    a(f"v_add_u32 {v_ab[1]}, 51200, {v_ab[0]}")
    v_of = V()
    a(f"s_mul_i32 {st[0]}, {st[0]}, 20480")
    a(f"s_add_u32 {st[0]}, {st[0]}, {O_OFF}")
    a(f"v_lshl_add_u32 {v_of}, {vl}, 4, {st[0]}")
    acc = V(20, 4); wf = [V(20, 2) for _ in range(3)]
    of = A(80, 4)
    for i in range(20): a(f"v_mov_b32 {acc[i]}, 0")
    g.drain()
    g.poll(S2, g.s_rb)
    g.stamp("s2_done")
    for kb in range(20):
        if kb % 4 == 0: a(f"s_mov_b32 {g.s_so}, {1024*kb}")
        a(f"buffer_load_dwordx4 {of.sub(4*kb,4)}, {v_of}, {g.r_ws}, {g.s_so} offen offset:{1024*(kb%4)} sc1")
        g.vm.add(("o", kb))
    def reads(t):
        base = v_ab[0] if t < 10 else v_ab[1]
        out = []
        for nb in range(5):
            for th in range(2):
                out.append(f"ds_read_b64_tr_b16 {wf[t%3].sub(4*nb+2*th,2)}, {base} offset:{(32*(t%10)+8*th)*160 + 32*nb}")
        return out
    for l in reads(0) + reads(1): a(l)
    for t in range(20):
        rd = reads(t+2) if t + 2 < 20 else []
        g.wait(g.vm.wait(("o", t)), 10 if t + 1 < 20 else 0)
        for nb in range(5):
            a(f"v_mfma_f32_16x16x32_bf16 {acc.sub(4*nb,4)}, {wf[t%3].sub(4*nb,4)}, {of.sub(4*t,4)}, {acc.sub(4*nb,4)}")
            for l in rd[2*nb:2*nb+2]: a(l)
    g.stamp("p3_loop")
    a("s_barrier")
    xf = wf[0]
    for i in range(10):
        a(f"v_lshlrev_b32 {xf[2*i]}, 16, {xr[i]}")
        a(f"v_and_b32 {xf[2*i+1]}, 0xffff0000, {xr[i]}")
    for i in range(10):
        a(f"v_pk_add_f32 {acc.sub(2*i,2)}, {acc.sub(2*i,2)}, {xf.sub(2*i,2)}")
    for i in range(10):
        a(f"v_cvt_pk_bf16_f32 {g.hp[i]}, {acc[2*i]}, {acc[2*i+1]}")
    tmp4 = [wf[1].sub(0,4), wf[1].sub(4,4), wf[1].sub(8,4)]
    ad = wf[2].sub(0, 3)
    a(f"s_lshl_b32 {st[0]}, {g.s_rb64}, 2")
    a(f"s_add_u32 {st[0]}, {st[0]}, {g.s_w}")
    a(f"s_lshr_b32 {st[1]}, {st[0]}, 1")
    a(f"s_mul_i32 {st[1]}, {st[1]}, 40")
    a(f"s_mul_i32 {st[2]}, {g.s_ct}, 5")
    a(f"s_add_u32 {st[1]}, {st[1]}, {st[2]}")
    a(f"s_lshl_b32 {st[1]}, {st[1]}, 10")
    a(f"s_and_b32 {st[2]}, {g.s_w}, 1")
    a(f"s_lshl_b32 {st[2]}, {st[2]}, 8")
    a(f"s_add_u32 {st[1]}, {st[1]}, {st[2]}")
    a(f"s_add_u32 {st[1]}, {st[1]}, {H_OFF}")
    a(f"v_bfe_u32 {vt[0]}, {vl}, 4, 1")
    a(f"v_lshlrev_b32 {vt[0]}, 10, {vt[0]}")
    a(f"v_lshrrev_b32 {vt[1]}, 5, {vl}")
    a(f"v_lshl_add_u32 {vt[0]}, {vt[1]}, 9, {vt[0]}")
    a(f"v_and_b32 {vt[1]}, 15, {vl}")
    a(f"v_lshl_add_u32 {vt[0]}, {vt[1]}, 4, {vt[0]}")
    a(f"v_add_u32 {ad[0]}, {st[1]}, {vt[0]}")
    a(f"v_add_u32 {ad[1]}, 2048, {ad[0]}")
    a(f"v_add_u32 {ad[2]}, 4096, {ad[0]}")
    a(f"v_bfe_u32 {vt[2]}, {vl}, 4, 1")
    a(f"v_cmp_eq_u32 vcc, 0, {vt[2]}")
    a(f"v_mov_b32 {vt[3]}, {OOB:#x}")
    a(f"v_cndmask_b32 {ad[2]}, {vt[3]}, {ad[2]}, vcc")
    pair_store(g, g.hp, tmp4, ad, g.r_ws, " sc1")
    sq = xf.sub(0, 4)
    s_ones = st[4]
    a(f"s_mov_b32 {s_ones}, {ONES2:#x}")
    for i in range(4): a(f"v_mov_b32 {sq[i]}, 0")
    for i in range(10):
        a(f"v_dot2c_f32_bf16 {sq[i%2]}, {s_ones}, {g.hp[i]}")
        a(f"v_dot2c_f32_bf16 {sq[2+i%2]}, {g.hp[i]}, {g.hp[i]}")
    a(f"v_add_f32 {sq[0]}, {sq[0]}, {sq[1]}")
    a(f"v_add_f32 {sq[2]}, {sq[2]}, {sq[3]}")
    a(f"v_permlane32_swap_b32 {sq[0]}, {sq[2]}")
    a(f"v_add_f32 {sq[0]}, {sq[0]}, {sq[2]}")
    a(f"v_mov_b32 {sq[1]}, {sq[0]}")
    a(f"v_permlane16_swap_b32 {sq[0]}, {sq[1]}")
    a(f"v_add_f32 {sq[0]}, {sq[0]}, {sq[1]}")
    a(f"v_lshlrev_b32 {vt[0]}, 6, {v_row}")
    a(f"s_lshl_b32 {st[0]}, {g.s_ct}, 3")
    a(f"s_add_u32 {st[0]}, {st[0]}, {HST_OFF}")
    a(f"v_add_u32 {vt[0]}, {st[0]}, {vt[0]}")
    a(f"v_lshrrev_b32 {vt[1]}, 5, {vl}")
    a(f"v_lshl_add_u32 {vt[0]}, {vt[1]}, 2, {vt[0]}")
    a(f"v_cndmask_b32 {vt[0]}, {vt[3]}, {vt[0]}, vcc")
    a(f"buffer_store_dword {sq[0]}, {vt[0]}, {g.r_ws}, 0 offen sc1")
    g.drain()
    a("s_barrier")
    g.signal(S3, g.s_rb)
    g.stamp("p3_sig")
    V.release(mark); A.release(amark)

P4_NS = 6
CSX_OFF = 147456
CSF_OFF = CSX_OFF + 4096
def p4(g):
    a, S, V, A = g.a, g.S, g.V, g.A
    st, vt, vl = g.s_t, g.v_t, g.v_l
    mark = V.mark(); amark = A.mark()
    NS = P4_NS
    csp = V(16, 4)
    a(f"s_lshl_b32 {st[0]}, {g.s_j}, 4")
    a(f"s_lshl_b32 {st[1]}, {g.s_w}, 2")
    a(f"s_add_u32 {st[0]}, {st[0]}, {st[1]}")
    a(f"s_lshl_b32 {st[0]}, {st[0]}, 10")
    a(f"s_add_u32 {st[0]}, {st[0]}, {CSGU_OFF}")
    a(f"v_lshl_add_u32 {vt[0]}, {vl}, 4, {st[0]}")
    for i in range(4):
        a(f"buffer_load_dwordx4 {csp.sub(4*i,4)}, {vt[0]}, {g.r_ws}, 0 offen offset:{1024*i} sc1")
    g.vm.add("csp", 4)
    v_dg = V(3); v_du = V(3)
    s_m0 = S()
    a(f"s_mov_b32 {st[2]}, 0x15555556")
    a(f"s_mul_i32 {st[0]}, {g.s_w}, 192")
    a(f"s_mul_i32 {st[1]}, {g.s_j}, 192")
    for j in range(3):
        a(f"v_add_u32 {vt[0]}, {st[0]}, {vl}")
        if j: a(f"v_add_u32 {vt[0]}, {64*j}, {vt[0]}")
        a(f"v_mul_hi_u32 {vt[1]}, {vt[0]}, {st[2]}")
        a(f"v_mul_u32_u24 {vt[2]}, 12, {vt[1]}")
        a(f"v_sub_u32 {vt[2]}, {vt[0]}, {vt[2]}")
        a(f"v_mul_u32_u24 {vt[1]}, 3072, {vt[1]}")
        a(f"v_add_u32 {vt[1]}, {st[1]}, {vt[1]}")
        a(f"v_lshl_add_u32 {v_dg[j]}, {vt[2]}, 4, {vt[1]}")
        a(f"v_xor_b32 {vt[3]}, 2, {vt[2]}")
        a(f"v_lshl_add_u32 {v_du[j]}, {vt[3]}, 4, {vt[1]}")
        if j:
            a(f"v_subrev_u32 {v_dg[j]}, {1024*j}, {v_dg[j]}")
            a(f"v_subrev_u32 {v_du[j]}, {1024*j}, {v_du[j]}")
    a(f"s_mul_i32 {s_m0}, {g.s_w}, 3072")
    def dma_stage(stg):
        slot = stg % NS
        L = [[f"s_mov_b32 {g.s_so2}, {stg*64*3072}", f"s_add_u32 m0, {s_m0}, {slot*24576}",
              f"buffer_load_dwordx4 {v_dg[0]}, {g.r_wg}, {g.s_so2} offen lds"]]
        for j in (1, 2): L.append([f"buffer_load_dwordx4 {v_dg[j]}, {g.r_wg}, {g.s_so2} offen offset:{1024*j} lds"])
        L.append([f"s_add_u32 m0, {s_m0}, {slot*24576+12288}", f"buffer_load_dwordx4 {v_du[0]}, {g.r_wu}, {g.s_so2} offen lds"])
        for j in (1, 2): L.append([f"buffer_load_dwordx4 {v_du[j]}, {g.r_wu}, {g.s_so2} offen offset:{1024*j} lds"])
        return L
    NPRE = 3
    for stg in range(NPRE):
        for grp in dma_stage(stg):
            for l in grp: a(l)
            g.vm.add(("d", stg))
    v_be = V(2); v_bo = V(2)
    a(f"v_lshrrev_b32 {vt[0]}, 4, {vl}")
    a(f"v_and_b32 {vt[1]}, 1, {vt[0]}")
    a(f"v_lshrrev_b32 {vt[0]}, 1, {vt[0]}")
    a(f"v_lshlrev_b32 {vt[0]}, 3, {vt[0]}")
    a(f"v_bfe_u32 {vt[2]}, {vl}, 2, 2")
    a(f"v_add_u32 {vt[0]}, {vt[0]}, {vt[2]}")
    a(f"v_mul_u32_u24 {vt[0]}, 192, {vt[0]}")
    a(f"v_and_b32 {vt[2]}, 3, {vl}")
    a(f"v_lshl_add_u32 {vt[0]}, {vt[2]}, 3, {vt[0]}")
    a(f"v_mul_u32_u24 {vt[2]}, 12288, {vt[1]}")
    a(f"v_add_u32 {vt[0]}, {vt[0]}, {vt[2]}")
    a(f"v_lshlrev_b32 {vt[1]}, 5, {vt[1]}")
    a(f"v_add_u32 {v_be[0]}, {vt[0]}, {vt[1]}")
    a(f"v_sub_u32 {v_bo[0]}, {vt[0]}, {vt[1]}")
    a(f"v_add_u32 {v_be[1]}, {3*24576}, {v_be[0]}")
    a(f"v_add_u32 {v_bo[1]}, {3*24576}, {v_bo[0]}")
    v_h = V()
    a(f"s_lshl_b32 {st[0]}, {g.s_rb}, 2")
    a(f"s_add_u32 {st[0]}, {st[0]}, {g.s_w}")
    a(f"s_mul_i32 {st[0]}, {st[0]}, 40960")
    a(f"s_add_u32 {st[0]}, {st[0]}, {H_OFF}")
    a(f"v_lshl_add_u32 {v_h}, {vl}, 4, {st[0]}")
    acc = V(96, 4); wf = [V(24, 2), V(24, 2)]
    hf = A(160, 4)
    for i in range(96): a(f"v_mov_b32 {acc[i]}, 0")
    g.waitvm("csp")
    for i in range(1, 4):
        for p in range(2):
            a(f"v_pk_add_f32 {csp.sub(2*p,2)}, {csp.sub(2*p,2)}, {csp.sub(4*i+2*p,2)}")
    a(f"s_lshl_b32 {st[0]}, {g.s_w}, 10")
    a(f"s_add_u32 {st[0]}, {st[0]}, {CSX_OFF}")
    a(f"v_lshl_add_u32 {vt[0]}, {vl}, 4, {st[0]}")
    a(f"ds_write_b128 {vt[0]}, {csp.sub(0,4)}")
    g.drain(0)
    g.poll(S3, g.s_rb)
    g.stamp("s3_done")
    PD = 6
    def hload(t):
        L = []
        if t % 4 == 0: L.append(f"s_mov_b32 {g.s_so}, {1024*t}")
        L.append(f"buffer_load_dwordx4 {hf.sub(4*t,4)}, {v_h}, {g.r_ws}, {g.s_so} offen offset:{1024*(t%4)} sc1")
        return L
    for t in range(PD):
        for l in hload(t): a(l)
        g.vm.add(("h", t))
    hs = V(8, 4); v_hs = V()
    a(f"s_lshl_b32 {st[0]}, {g.s_rb}, 7")
    a(f"s_lshl_b32 {st[1]}, {g.s_w}, 5")
    a(f"s_add_u32 {st[0]}, {st[0]}, {st[1]}")
    a(f"v_and_b32 {vt[0]}, 31, {vl}")
    a(f"v_add_u32 {vt[0]}, {st[0]}, {vt[0]}")
    a(f"v_lshlrev_b32 {vt[0]}, 6, {vt[0]}")
    a(f"v_lshrrev_b32 {vt[1]}, 5, {vl}")
    a(f"v_lshl_add_u32 {vt[0]}, {vt[1]}, 5, {vt[0]}")
    a(f"v_add_u32 {v_hs}, {HST_OFF}, {vt[0]}")
    a(f"buffer_load_dwordx4 {hs.sub(0,4)}, {v_hs}, {g.r_ws}, 0 offen sc1")
    a(f"buffer_load_dwordx4 {hs.sub(4,4)}, {v_hs}, {g.r_ws}, 0 offen offset:16 sc1")
    g.vm.add("hs", 2)
    cx = csp
    a(f"v_lshlrev_b32 {vt[0]}, 4, {vl}")
    a(f"v_add_u32 {vt[0]}, {CSX_OFF}, {vt[0]}")
    for i in range(4): a(f"ds_read_b128 {cx.sub(4*i,4)}, {vt[0]} offset:{1024*i}")
    a("s_waitcnt lgkmcnt(0)")
    for i in range(1, 4):
        for p in range(2):
            a(f"v_pk_add_f32 {cx.sub(2*p,2)}, {cx.sub(2*p,2)}, {cx.sub(4*i+2*p,2)}")
    a(f"s_lshl_b32 {st[0]}, {g.s_w}, 10")
    a(f"s_add_u32 {st[0]}, {st[0]}, {CSF_OFF}")
    a(f"v_lshl_add_u32 {vt[0]}, {vl}, 4, {st[0]}")
    a(f"ds_write_b128 {vt[0]}, {cx.sub(0,4)}")
    a("s_waitcnt lgkmcnt(0)")
    def reads(t):
        stg, u = t >> 2, t & 3; slot = stg % NS
        grp, sl = slot // 3, slot % 3
        out = []
        for b in range(6):
            base = v_be[grp] if b % 2 == 0 else v_bo[grp]
            for th in range(2):
                out.append(f"ds_read_b64_tr_b16 {wf[t&1].sub(4*b+2*th,2)}, {base} offset:{sl*24576 + (16*u+4*th)*192 + 32*b}")
        return out
    for l in reads(0): a(l)
    pend = []
    for stg in range(NPRE, NS): pend += [(grp, ("d", stg)) for grp in dma_stage(stg)]
    for t in range(40):
        stg, u = t >> 2, t & 3
        tags = [("h", t)]
        bar = (u == 1 and stg + 1 < 10)
        if bar: tags.append(("d", stg+1))
        vmn = g.vm.wait(*tags)
        rd = reads(t+1) if t + 1 < 40 else []
        if bar and stg >= 1 and stg - 1 + NS < 10:
            pend += [(grp, ("d", stg-1+NS)) for grp in dma_stage(stg-1+NS)]
        for b in range(6):
            lg = None
            if b % 2 == 0:
                lg = 2*(6-b-2) + (2*b if t + 1 < 40 else 0)
            g.wait(vmn if b == 0 else None, lg)
            if b == 0 and bar: a("s_barrier")
            a(f"v_mfma_f32_32x32x16_bf16 {acc.sub(16*b,16)}, {wf[t&1].sub(4*b,4)}, {hf.sub(4*t,4)}, {acc.sub(16*b,16)}")
            for l in rd[2*b:2*b+2]: a(l)
            if b == 1 and t + PD < 40:
                for l in hload(t+PD): a(l)
                g.vm.add(("h", t+PD))
            if pend and b in (3, 5):
                grp, tag = pend.pop(0)
                for l in grp: a(l)
                g.vm.add(tag)
    assert not pend
    g.stamp("p4_loop")
    g.waitvm("hs")
    for p in (1, 2, 3):
        a(f"v_pk_add_f32 {hs.sub(0,2)}, {hs.sub(0,2)}, {hs.sub(2*p,2)}")
    a(f"v_mov_b32 {hs[2]}, {hs[0]}"); a(f"v_mov_b32 {hs[3]}, {hs[1]}")
    a(f"v_permlane32_swap_b32 {hs[0]}, {hs[2]}")
    a(f"v_permlane32_swap_b32 {hs[1]}, {hs[3]}")
    a(f"v_pk_add_f32 {hs.sub(0,2)}, {hs.sub(0,2)}, {hs.sub(2,2)}")
    nm = hs.sub(4, 2); r2 = hs.sub(6, 2)
    a(f"v_mul_f32 {nm[0]}, {f32hex(-1/640)}, {hs[0]}")
    a(f"v_mul_f32 {hs[1]}, {f32hex(1/640)}, {hs[1]}")
    a(f"v_fma_f32 {hs[1]}, -{nm[0]}, {nm[0]}, {hs[1]}")
    a(f"v_max_f32 {hs[1]}, 0, {hs[1]}")
    a(f"v_add_f32 {hs[1]}, {f32hex(1e-5)}, {hs[1]}")
    a(f"v_rcp_f32 {r2[0]}, {hs[1]}")
    v_cs = V(); v_ao = V()
    a(f"s_lshl_b32 {st[0]}, {g.s_w}, 10")
    a(f"s_add_u32 {st[0]}, {st[0]}, {CSF_OFF}")
    a(f"v_lshrrev_b32 {vt[0]}, 5, {vl}")
    a(f"v_lshl_add_u32 {v_cs}, {vt[0]}, 4, {st[0]}")
    a(f"s_lshl_b32 {st[0]}, {g.s_rb}, 3")
    a(f"s_lshl_b32 {st[1]}, {g.s_w}, 1")
    a(f"s_add_u32 {st[0]}, {st[0]}, {st[1]}")
    a(f"s_mul_i32 {st[0]}, {st[0]}, {48*1024}")
    a(f"s_mul_i32 {st[1]}, {g.s_j}, 3072")
    a(f"s_add_u32 {st[0]}, {st[0]}, {st[1]}")
    a(f"s_add_u32 {st[0]}, {st[0]}, {ACT_OFF}")
    a(f"v_bfe_u32 {vt[1]}, {vl}, 4, 1")
    a(f"v_mul_u32_u24 {vt[1]}, {48*1024}, {vt[1]}")
    a(f"v_lshl_add_u32 {vt[1]}, {vt[0]}, 8, {vt[1]}")
    a(f"v_and_b32 {vt[2]}, 15, {vl}")
    a(f"v_lshl_add_u32 {vt[1]}, {vt[2]}, 4, {vt[1]}")
    a(f"v_add_u32 {v_ao}, {st[0]}, {vt[1]}")
    cb = [wf[0].sub(0, 16), wf[1].sub(0, 16)]
    ob = [wf[0].sub(16, 4), wf[1].sub(16, 4)]
    def csreads(b):
        d = cb[b & 1]
        for q in range(2):
            a(f"ds_read_b128 {d.sub(4*q,4)}, {v_cs} offset:{64*b + 32*q}")
            a(f"ds_read_b128 {d.sub(8+4*q,4)}, {v_cs} offset:{512 + 64*b + 32*q}")
    csreads(0)
    for b in range(6):
        if b + 1 < 6: csreads(b+1)
        g.wait(None, 4 if b + 1 < 6 else 0)
        c = cb[b & 1]; X = acc.sub(16*b, 16); o = ob[b & 1]
        for p in range(8):
            a(f"v_pk_fma_f32 {X.sub(2*p,2)}, {c.sub(2*p,2)}, {nm}, {X.sub(2*p,2)} op_sel_hi:[1,0,1]")
        for e in range(8): a(f"v_max_f32 {X[e]}, 0, {X[e]}")
        for p in range(4):
            a(f"v_pk_mul_f32 {X.sub(8+2*p,2)}, {X.sub(8+2*p,2)}, {r2} op_sel_hi:[1,0]")
        for p in range(4):
            a(f"v_pk_mul_f32 {X.sub(2*p,2)}, {X.sub(2*p,2)}, {X.sub(8+2*p,2)}")
        for p in range(4):
            a(f"v_cvt_pk_bf16_f32 {o[p]}, {X[2*p]}, {X[2*p+1]}")
        a(f"buffer_store_dwordx4 {o}, {v_ao}, {g.r_ws}, 0 offen offset:{1024*(b>>1) + 512*(b&1)} sc1")
    g.drain()
    a("s_barrier")
    g.signal(S4, g.s_rb)
    g.stamp("p4_sig")
    V.release(mark); A.release(amark)

P5_NS = 7
XCH_OFF = 0
def p5(g):
    a, S, V, A = g.a, g.S, g.V, g.A
    st, vt, vl = g.s_t, g.v_t, g.v_l
    mark = V.mark(); amark = A.mark()
    NS = P5_NS
    s_kh = S(); s_sh = S(); s_p2 = S(); s_m0 = S(); s_sob = S()
    a(f"s_and_b32 {s_kh}, {g.s_w}, 1")
    a(f"s_lshr_b32 {s_sh}, {g.s_w}, 1")
    wrow_setup(g, swap23=False)
    a(f"s_mul_i32 {s_m0}, {s_kh}, 10240")
    a(f"s_mul_i32 {st[0]}, {s_sh}, 5120")
    a(f"s_add_u32 {s_m0}, {s_m0}, {st[0]}")
    a(f"s_mul_i32 {s_sob}, {s_kh}, {768*1280}")
    a(f"s_mul_i32 {st[0]}, {s_sh}, {32*1280}")
    a(f"s_add_u32 {s_sob}, {s_sob}, {st[0]}")
    def dma_stage(stg):
        slot = stg % NS
        return wrow_dma(g, g.r_wd, None, None,
                        so_line=[f"s_add_u32 {g.s_wso}, {s_sob}, {stg*64*1280}"],
                        m0_line0=[f"s_add_u32 m0, {s_m0}, {slot*20480}"],
                        m0_line4=[f"s_add_u32 m0, {s_m0}, {slot*20480 + 4096}"])
    NPRE = 3
    for stg in range(NPRE):
        for grp in dma_stage(stg):
            for l in grp: a(l)
            g.vm.add(("d", stg))
    v_ab = V(3)
    a(f"s_mul_i32 {st[0]}, {s_kh}, 10240")
    tr160_base(g, v_ab[0], st[0])
    a(f"v_add_u32 {v_ab[1]}, {3*20480}, {v_ab[0]}")
    a(f"v_add_u32 {v_ab[2]}, {6*20480}, {v_ab[0]}")
    v_af = V(2)
    a(f"s_lshl_b32 {st[0]}, {g.s_rb64}, 2")
    a(f"s_lshl_b32 {st[1]}, {s_sh}, 1")
    a(f"s_add_u32 {st[0]}, {st[0]}, {st[1]}")
    a(f"s_mul_i32 {st[0]}, {st[0]}, 48")
    a(f"s_mul_i32 {st[1]}, {s_kh}, 24")
    a(f"s_add_u32 {st[0]}, {st[0]}, {st[1]}")
    a(f"s_lshl_b32 {st[0]}, {st[0]}, 10")
    a(f"s_add_u32 {st[0]}, {st[0]}, {ACT_OFF}")
    a(f"v_lshl_add_u32 {v_af[0]}, {vl}, 4, {st[0]}")
    a(f"v_add_u32 {v_af[1]}, {48*1024}, {v_af[0]}")
    acc = V(40, 4); wf = [V(20, 2), V(20, 2)]
    RING = 12
    af = A(8*RING, 4)
    for i in range(40): a(f"v_mov_b32 {acc[i]}, 0")
    g.drain()
    g.poll(S4, g.s_rb)
    g.stamp("s4_done")
    def aload(t):
        L = []
        if t % 4 == 0: L.append(f"s_mov_b32 {g.s_so}, {1024*t}")
        for sb in range(2):
            L.append(f"buffer_load_dwordx4 {af.sub(8*(t%RING)+4*sb,4)}, {v_af[sb]}, {g.r_ws}, {g.s_so} offen offset:{1024*(t%4)} sc1")
        return L
    PD = 8
    for t in range(PD):
        for l in aload(t): a(l)
        g.vm.add(("a", t), 2)
    def reads(t):
        stg, p2 = t >> 1, t & 1; slot = stg % NS
        base = v_ab[slot // 3]; sl = slot % 3
        return [f"ds_read_b64_tr_b16 {wf[t&1].sub(4*nb+2*th,2)}, {base} offset:{sl*20480 + (32*p2+8*th)*160 + 32*nb}"
                for nb in range(5) for th in range(2)]
    for l in reads(0): a(l)
    pend = []
    for stg in range(NPRE, NS): pend += [(grp, ("d", stg)) for grp in dma_stage(stg)]
    for t in range(24):
        stg, u = t >> 1, t & 1
        tags = [("a", t)]
        bar = (u == 0 and stg + 1 < 12)
        if bar: tags.append(("d", stg+1))
        vmn = g.vm.wait(*tags)
        rd = reads(t+1) if t + 1 < 24 else []
        if bar and stg >= 1 and stg - 1 + NS < 12:
            pend += [(grp, ("d", stg-1+NS)) for grp in dma_stage(stg-1+NS)]
        k = 0
        for nb in range(5):
            lg = 2*(4-nb) + (2*nb if t + 1 < 24 else 0)
            g.wait(vmn if nb == 0 else None, lg)
            if nb == 0 and bar: a("s_barrier")
            for sb in range(2):
                X = acc.sub(20*sb+4*nb, 4)
                a(f"v_mfma_f32_16x16x32_bf16 {X}, {wf[t&1].sub(4*nb,4)}, {af.sub(8*(t%RING)+4*sb,4)}, {X}")
                if rd: a(rd[2*nb+sb])
            if nb == 1 and t + PD < 24:
                for l in aload(t+PD): a(l)
                g.vm.add(("a", t+PD), 2)
            if pend and nb in (2, 3, 4):
                grp, tag = pend.pop(0)
                for l in grp: a(l)
                g.vm.add(tag)
    assert not pend
    g.stamp("p5_loop")
    a("s_barrier")
    a(f"s_mul_i32 {st[0]}, {g.s_w}, 5120")
    a(f"v_lshl_add_u32 {vt[0]}, {vl}, 4, {st[0]}")
    a(f"s_xor_b32 {st[1]}, {g.s_w}, 1")
    a(f"s_mul_i32 {st[1]}, {st[1]}, 5120")
    a(f"v_lshl_add_u32 {vt[1]}, {vl}, 4, {st[1]}")
    lk = a.newlabel("x1"); le = a.newlabel("xe")
    fin = wf[0]; oth = wf[1]
    a(f"s_cmp_eq_u32 {s_kh}, 0")
    a(f"s_cbranch_scc0 {lk}")
    for q in range(5): a(f"ds_write_b128 {vt[0]}, {acc.sub(20+4*q,4)} offset:{1024*q}")
    for i in range(20): a(f"v_mov_b32 {fin[i]}, {acc[i]}")
    a(f"s_branch {le}")
    a.label(lk)
    for q in range(5): a(f"ds_write_b128 {vt[0]}, {acc.sub(4*q,4)} offset:{1024*q}")
    for i in range(20): a(f"v_mov_b32 {fin[i]}, {acc[20+i]}")
    a.label(le)
    a("s_waitcnt lgkmcnt(0)")
    a("s_barrier")
    for q in range(5): a(f"ds_read_b128 {oth.sub(4*q,4)}, {vt[1]} offset:{1024*q}")
    xf = acc.sub(0, 20)
    for i in range(10):
        a(f"v_lshlrev_b32 {xf[2*i]}, 16, {g.hp[i]}")
        a(f"v_and_b32 {xf[2*i+1]}, 0xffff0000, {g.hp[i]}")
    for i in range(10):
        a(f"v_pk_add_f32 {fin.sub(2*i,2)}, {fin.sub(2*i,2)}, {xf.sub(2*i,2)}")
    a("s_waitcnt lgkmcnt(0)")
    for i in range(10):
        a(f"v_pk_add_f32 {fin.sub(2*i,2)}, {fin.sub(2*i,2)}, {oth.sub(2*i,2)}")
    op = acc.sub(20, 10)
    for i in range(10):
        a(f"v_cvt_pk_bf16_f32 {op[i]}, {fin[2*i]}, {fin[2*i+1]}")
    tmp4 = [acc.sub(0,4), acc.sub(4,4), acc.sub(8,4)]
    ad = oth.sub(0, 3)
    a(f"s_lshl_b32 {st[0]}, {g.s_rb64}, 2")
    a(f"s_add_u32 {st[0]}, {st[0]}, {g.s_w}")
    a(f"s_lshl_b32 {st[0]}, {st[0]}, 4")
    a(f"v_and_b32 {vt[0]}, 15, {vl}")
    a(f"v_add_u32 {vt[0]}, {st[0]}, {vt[0]}")
    a(f"v_mul_u32_u24 {vt[0]}, 1280, {vt[0]}")
    a(f"v_bfe_u32 {vt[1]}, {vl}, 4, 1")
    a(f"v_lshl_add_u32 {vt[0]}, {vt[1]}, 5, {vt[0]}")
    a(f"v_lshrrev_b32 {vt[2]}, 5, {vl}")
    a(f"v_lshl_add_u32 {vt[0]}, {vt[2]}, 4, {vt[0]}")
    a(f"s_mul_i32 {st[1]}, {g.s_ct}, 160")
    a(f"v_add_u32 {ad[0]}, {st[1]}, {vt[0]}")
    a(f"v_add_u32 {ad[1]}, 64, {ad[0]}")
    a(f"v_add_u32 {ad[2]}, 128, {ad[0]}")
    a(f"v_cmp_eq_u32 vcc, 0, {vt[1]}")
    a(f"v_mov_b32 {vt[3]}, {OOB:#x}")
    a(f"v_cndmask_b32 {ad[2]}, {vt[3]}, {ad[2]}, vcc")
    pair_store(g, op, tmp4, ad, g.r_out, "")
    g.stamp("p5_end")
    V.release(mark); A.release(amark)

def run_phases(g):
    p1(g)
    if g.stop_after == "p1": return
    p2(g)
    if g.stop_after == "p2": return
    p3(g)
    if g.stop_after == "p3": return
    p4(g)
    if g.stop_after == "p4": return
    p5(g)
```

```python
import re, subprocess, os, tempfile

REG_RE = re.compile(r'^(-|abs\()?\s*([vas])(?:(\d+)|\[(\d+):(\d+)\])\)?$')

def regs_of(tok):
    tok = tok.strip()
    if tok in ("vcc",): return {("s", "vcc")}
    if tok in ("vcc_lo", "vcc_hi"): return {("s", "vcc")}
    if tok == "exec": return {("s", "exec")}
    if tok == "m0": return {("s", "m0")}
    m = REG_RE.match(tok)
    if not m: return set()
    k = m.group(2)
    if m.group(3) is not None:
        return {(k, int(m.group(3)))}
    return {(k, i) for i in range(int(m.group(4)), int(m.group(5)) + 1)}

def split_ops(s):
    out, depth, cur = [], 0, ""
    for ch in s:
        if ch in "[(": depth += 1
        if ch in "])": depth -= 1
        if ch == "," and depth == 0:
            out.append(cur.strip()); cur = ""
        else: cur += ch
    if cur.strip(): out.append(cur.strip())
    return out

TRANS = ("v_exp_f32", "v_log_f32", "v_rcp_f32", "v_rsq_f32", "v_sqrt_f32", "v_sin_f32", "v_cos_f32")

class I:
    def __init__(self, text):
        self.text = text
        t = text.split(";")[0].strip()
        self.label = None
        self.isinst = False
        if not t: return
        if t.endswith(":"):
            self.label = t[:-1]; return
        if t.startswith("."): return
        self.isinst = True
        parts = t.split(None, 1)
        self.mn = parts[0]
        rest = parts[1] if len(parts) > 1 else ""
        ops = split_ops(rest)
        clean = []
        self.mods = ""
        for o in ops:
            w = o.split()
            if len(w) > 1 and not o.startswith("hwreg") :
                clean.append(w[0]); self.mods += " " + " ".join(w[1:])
            else:
                clean.append(o)
        self.ops = clean
        mn = re.sub(r'_(e32|e64|dpp|sdwa)$', '', self.mn)
        self.base = mn
        self.defs, self.uses = set(), set()
        self.cls = "other"
        R = [regs_of(o) for o in clean]
        if mn.startswith("v_mfma"):
            self.cls = "mfma"
            self.passes = 8 if "32x32x16" in mn or "32x32x8" in mn else (4 if "16x16x32" in mn or "16x16x16" in mn else (2 if "4x4x4" in mn else 16))
            self.defs = R[0]; self.srcc = R[3] if len(R) > 3 else set()
            self.srcab = R[1] | R[2]
            self.uses = self.srcab | self.srcc
        elif mn.startswith("v_"):
            self.cls = "valu"
            self.trans = mn in TRANS
            self.dpp = ("_dpp" in self.mn) or any(k in rest for k in ("quad_perm", "row_sh", "row_ro", "row_mirror", "row_half_mirror", "row_bcast", "wave_"))
            if mn.startswith("v_cmp"):
                self.defs = R[0]
                for r in R[1:]: self.uses |= r
                if mn.startswith("v_cmpx"): self.defs |= {("s", "exec")}
            elif mn in ("v_readfirstlane_b32", "v_readlane_b32"):
                self.defs = R[0]
                for r in R[1:]: self.uses |= r
            elif mn.startswith("v_permlane"):
                self.defs = R[0] | R[1]; self.uses = R[0] | R[1]
            elif mn in ("v_add_co_u32", "v_sub_co_u32", "v_addc_co_u32", "v_subb_co_u32"):
                self.defs = R[0] | R[1]
                for r in R[2:]: self.uses |= r
            else:
                self.defs = R[0]
                for r in R[1:]: self.uses |= r
                if mn in ("v_fmac_f32", "v_dot2c_f32_bf16", "v_pk_fmac_f16", "v_writelane_b32") or mn.startswith("v_accvgpr_mov"):
                    if mn != "v_accvgpr_mov_b32": self.uses |= R[0]
                if self.dpp: self.uses |= R[0]
                if "d16" in mn: self.uses |= R[0]
        elif mn.startswith("ds_"):
            self.cls = "ds"
            if mn.startswith("ds_read") or mn.startswith("ds_bpermute") or mn.startswith("ds_permute") or mn.startswith("ds_swizzle"):
                self.defs = R[0]
                for r in R[1:]: self.uses |= r
            else:
                for r in R: self.uses |= r
        elif mn.startswith("buffer_") or mn.startswith("global_"):
            self.cls = "vmem"
            self.lds = " lds" in (" " + rest + " ") or "load_lds" in mn or rest.rstrip().endswith("lds")
            self.store = "store" in mn or "atomic" in mn
            if mn in ("buffer_wbl2", "buffer_inv"): pass
            elif self.lds:
                for r in R: self.uses |= r
                self.uses |= {("s", "m0")}
            elif "load" in mn:
                self.defs = R[0]
                for r in R[1:]: self.uses |= r
                if "d16" in mn: self.uses |= R[0]
            else:
                for r in R: self.uses |= r
                if mn.startswith("buffer_"): self.data = R[0]
                else: self.data = R[1]
                if "atomic" in mn and "sc0" in rest: self.defs = self.data
                self.wide = ("x4" in mn or "x3" in mn)
        elif mn.startswith("s_"):
            self.cls = "salu"
            if mn == "s_nop":
                self.nop = int(clean[0], 0) + 1
            if mn.startswith("s_cmp") or mn.startswith("s_bitcmp") or mn in ("s_waitcnt", "s_barrier", "s_nop", "s_endpgm", "s_sleep", "s_setprio", "s_branch") or mn.startswith("s_cbranch"):
                for r in R: self.uses |= r
            elif mn.startswith("s_load") or mn.startswith("s_memtime") or mn.startswith("s_memrealtime") or mn == "s_getpc_b64" or mn == "s_getreg_b32":
                self.defs = R[0]
                for r in R[1:]: self.uses |= r
            else:
                self.defs = R[0] if R else set()
                for r in R[1:]: self.uses |= r
                if "saveexec" in mn: self.defs |= {("s", "exec")}; self.uses |= {("s","exec")}
        if self.cls == "valu" and mn == "v_cndmask_b32" and len(clean) == 3:
            self.uses |= {("s", "vcc")}
    def states(self):
        return getattr(self, "nop", 1)

def vonly(s): return {r for r in s if r[0] in "va"}
def sonly(s): return {r for r in s if r[0] == "s"}

def need(p, c):
    n = 0
    pv, ps = vonly(p.defs), sonly(p.defs)
    if p.cls == "valu":
        if c.cls == "mfma" and pv & c.uses: n = max(n, 2)
        if c.cls == "valu":
            if p.trans and not c.trans and pv & c.uses: n = max(n, 1)
            if p.trans and c.trans and pv & c.uses: n = max(n, 1)
            if c.base in ("v_readfirstlane_b32", "v_readlane_b32") and pv & c.uses: n = max(n, 1)
            if c.base.startswith("v_permlane") and pv & c.uses: n = max(n, 2)
            if c.dpp and pv & c.uses: n = max(n, 2)
            if ps & sonly(c.uses): n = max(n, 2)
            if c.base in ("v_readlane_b32", "v_writelane_b32") and ps & sonly(c.uses): n = max(n, 4)
            if ("s","exec") in ps and c.dpp: n = max(n, 5)
        if c.cls == "vmem" and ps & sonly(c.uses): n = max(n, 5)
        if c.cls == "mfma" and ("s","exec") in ps: n = max(n, 4)
    if p.cls == "valu" and p.base.startswith("v_dot"):
        if c.cls == "valu" and c.base == p.base:
            srcab = set()
            for o in c.ops[1:3]: srcab |= regs_of(o)
            if pv & srcab: n = max(n, 3)
        elif pv & (c.uses | c.defs): n = max(n, 3)
    if p.cls == "mfma":
        P = p.passes
        tbl_valu = {2: 5, 4: 8, 8: 12, 16: 20}[P]
        tbl_c = {2: 4, 4: 6, 8: 10, 16: 18}[P]
        if c.cls == "mfma":
            if p.defs & c.srcab: n = max(n, tbl_valu)
            if p.defs & c.srcc:
                if p.defs == c.srcc and c.passes == P: n = max(n, 2 if P == 2 else 0)
                else: n = max(n, tbl_c)
            elif p.defs & c.defs: n = max(n, tbl_c)
        elif c.cls in ("valu", "vmem", "ds"):
            if p.defs & (c.uses | c.defs): n = max(n, tbl_valu)
        if c.cls == "valu" and p.srcc & c.defs:
            n = max(n, {2: 1, 4: 3, 8: 7, 16: 15}[P])
    if p.cls == "salu":
        if ("s", "m0") in p.defs and c.cls == "vmem" and getattr(c, "lds", False): n = max(n, 1)
    if p.cls == "vmem" and getattr(p, "store", False) and getattr(p, "wide", False):
        if c.cls == "valu" and p.data & c.defs: n = max(n, 2)
        elif c.cls in ("ds", "vmem", "mfma") and p.data & c.defs: n = max(n, 1)
    return n

MAXD = 20
def hazard_pass(lines, verbose=False):
    ins = [I(l) for l in lines]
    total_added = 0
    while True:
        labels = {x.label: i for i, x in enumerate(ins) if x.label}
        preds = {}
        for i, x in enumerate(ins):
            if x.isinst and (x.mn == "s_branch" or x.mn.startswith("s_cbranch")):
                t = labels[x.ops[0]]
                preds.setdefault(t, []).append(i)
        def walk(i, dist, c, seen):
            deficit = 0
            j = i - 1
            while j >= 0 and dist < MAXD:
                x = ins[j]
                if x.label is not None:
                    for b in preds.get(j, []):
                        key = (b, dist)
                        if key not in seen:
                            seen.add(key)
                            deficit = max(deficit, walk(b, dist + 1, c, seen))
                elif x.isinst:
                    if x.mn in ("s_branch", "s_endpgm", "s_setpc_b64"):
                        return deficit
                    nd = need(x, c)
                    if nd > dist: deficit = max(deficit, nd - dist)
                    dist += x.states()
                j -= 1
            return deficit
        changed = False
        out = []
        for i, x in enumerate(ins):
            if x.isinst and x.cls in ("valu", "mfma", "vmem", "ds"):
                d = walk(i, 0, x, set())
                if d > 0:
                    out.append(I(f"    s_nop {d-1}"))
                    total_added += d
                    changed = True
                    out.append(x)
                    out.extend(ins[i+1:])
                    break
            out.append(x)
        ins = out
        if not changed: break
    if verbose: print("hazard pads added (states):", total_added)
    return [x.text for x in ins]

def hazard_pass_fast(lines, verbose=False):
    ins = [I(l) for l in lines]
    labels = {x.label: i for i, x in enumerate(ins) if x.label}
    preds = {}
    for i, x in enumerate(ins):
        if x.isinst and (x.mn == "s_branch" or x.mn.startswith("s_cbranch")):
            preds.setdefault(labels[x.ops[0]], []).append(i)
    pad = [0]*len(ins)
    def walk(i, dist, c, seen):
        deficit = 0
        dist += pad[i]
        j = i - 1
        while j >= 0 and dist < MAXD:
            x = ins[j]
            if x.label is not None:
                for b in preds.get(j, []):
                    key = (b, dist)
                    if key not in seen:
                        seen.add(key)
                        deficit = max(deficit, walk(b, dist + 1, c, seen))
            elif x.isinst:
                if x.mn in ("s_branch", "s_endpgm", "s_setpc_b64"):
                    return deficit
                nd = need(x, c)
                if nd > dist: deficit = max(deficit, nd - dist)
                dist += x.states() + pad[j]
            j -= 1
        return deficit
    tot = 0
    for rnd in range(3):
        ch = False
        for i, x in enumerate(ins):
            if x.isinst and x.cls in ("valu", "mfma", "vmem", "ds"):
                d = walk(i, 0, x, set())
                if d > 0:
                    pad[i] += d; tot += d; ch = True
        if not ch: break
    out = []
    for i, x in enumerate(ins):
        p = pad[i]
        while p > 0:
            k = min(p, 16)
            out.append(f"    s_nop {k-1}")
            p -= k
        out.append(x.text)
    if verbose: print("hazard pad states:", tot)
    return out

PROMOTE = {"v_mov_b32", "v_add_f32", "v_sub_f32", "v_subrev_f32", "v_mul_f32", "v_max_f32", "v_min_f32", "v_add_u32", "v_sub_u32",
           "v_subrev_u32", "v_and_b32", "v_or_b32", "v_xor_b32", "v_lshlrev_b32", "v_lshrrev_b32", "v_ashrrev_i32", "v_exp_f32", "v_rcp_f32",
           "v_rsq_f32", "v_log_f32", "v_sqrt_f32", "v_fmac_f32", "v_mul_u32_u24", "v_cndmask_b32", "v_max_u32", "v_min_u32"}

def sizes_of(lines, clang="clang", objdump="llvm-objdump"):
    with tempfile.TemporaryDirectory() as d:
        s = os.path.join(d, "a.s"); o = os.path.join(d, "a.o")
        open(s, "w").write('.amdgcn_target "amdgcn-amd-amdhsa--gfx950"\n.text\n' + "\n".join(lines) + "\n")
        r = subprocess.run([clang, "-x", "assembler", "-target", "amdgcn-amd-amdhsa", "-mcpu=gfx950", "-c", s, "-o", o], capture_output=True, text=True)
        if r.returncode: raise RuntimeError(r.stderr[:3000])
        t = subprocess.run([objdump, "-d", "--mcpu=gfx950", o], capture_output=True, text=True).stdout
    res = []
    for l in t.splitlines():
        m = re.search(r'//\s([0-9A-F]{12}):((?:\s[0-9A-F]{8})+)', l)
        if m: res.append((int(m.group(1), 16), 4*len(m.group(2).split())))
    return res

def align_pass(lines, verbose=False, nop_fix_regions=True):
    ins = [I(l) for l in lines]
    idx = [i for i, x in enumerate(ins) if x.isinst]
    sz = sizes_of(lines)
    assert len(sz) == len(idx), (len(sz), len(idx))
    size = {i: s for i, (_, s) in zip(idx, sz)}
    off = 0; promoted = 0; misaligned = 0
    last4 = None
    for i in idx:
        x = ins[i]
        if size[i] >= 8 and off % 8 == 4:
            if last4 is not None:
                y = ins[last4]
                mn = y.mn
                t = y.text.replace(mn, y.base + "_e64", 1)
                ins[last4] = I(t); size[last4] = 8; off += 4; promoted += 1
                last4 = None
            else:
                misaligned += 1
        if size[i] == 4:
            lit = False
            if x.cls == "valu" and x.base in PROMOTE and not x.dpp and x.mn.endswith("_e64") is False and off % 8 == 0:
                last4 = i
            elif off % 8 == 0:
                last4 = None
            else:
                last4 = None
        else:
            last4 = None
        off += size[i]
    if verbose: print(f"align: promoted {promoted}, still misaligned 8B instrs {misaligned}, code bytes {off}")
    return [x.text for x in ins]
```

```python
import sys, os
sys.path.insert(0, os.path.dirname(os.path.abspath(__file__)))
from asmlib import *
import post

CNT_OFF   = 0x0
STATX_OFF = 0x10000
CSQ_OFF   = 0x20000
CSGU_OFF  = 0x40000
KVP_OFF   = 0x100000
O_OFF     = 0x300000
H_OFF     = 0x600000
HST_OFF   = 0x900000
ACT_OFF   = 0xA00000
DUMP_OFF  = 0x1000000
WS_BYTES  = 0x4000000
S0R, S0C, S1, S2, S3, S4, S4B = range(7)
OOB = 0x7ffffff0
LOG2E = 1.4426950408889634

def f32hex(x):
    import struct
    return "0x%08x" % struct.unpack("<I", struct.pack("<f", x))[0]

class VM:
    def __init__(self): self.q = []
    def add(self, tag, n=1): self.q += [tag]*n
    def count_after(self, tag):
        if tag not in self.q: return None
        idx = max(i for i, x in enumerate(self.q) if x == tag)
        return len(self.q) - 1 - idx
    def wait(self, *tags):
        ns = [self.count_after(t) for t in tags]
        ns = [n for n in ns if n is not None]
        if not ns: return None
        n = min(ns)
        self.q = self.q[len(self.q)-n:] if n > 0 else []
        return min(n, 63)
    def drain(self): self.q = []

class Gen:
    def __init__(self, stop_after=None, dump=None, stamps=False):
        self.a = Asm()
        self.stop_after = stop_after
        self.dump = dump
        self.stamps = stamps
        self.S = Alloc("s", 3, 102)
        self.V = Alloc("v", 1, 256)
        self.A = Alloc("a", 0, 256)
        self.vm = VM()
        self.nstamp = 0

    def wait(self, vm=None, lgkm=None):
        p = []
        if vm is not None: p.append(f"vmcnt({vm})")
        if lgkm is not None: p.append(f"lgkmcnt({lgkm})")
        if p: self.a("s_waitcnt " + " ".join(p))
    def waitvm(self, *tags, lgkm=None):
        self.wait(self.vm.wait(*tags), lgkm)
    def drain(self, lgkm=None):
        self.vm.drain(); self.wait(0, lgkm)
    def stamp(self, name):
        if not self.stamps: return
        a = self.a
        i = self.nstamp; self.nstamp += 1
        self.stamp_names = getattr(self, "stamp_names", []) + [name]
        a(f"s_memtime {self.s_st}")
        a("s_waitcnt lgkmcnt(0)")
        a(f"v_writelane_b32 {self.v_stamp}, {self.s_st[0]}, {i}")

    def srd(self, name, ptr, nbytes):
        a = self.a
        r = self.S(4, 4, name)
        a(f"s_mov_b32 {r[0]}, {ptr[0]}")
        a(f"s_and_b32 {r[1]}, {ptr[1]}, 0xffff")
        a(f"s_mov_b32 {r[2]}, {nbytes}")
        a(f"s_mov_b32 {r[3]}, 0x20000")
        return r

    def prologue(self):
        a, S, V = self.a, self.S, self.V
        pk = S(16, 4); p2 = S(4, 4); p3 = S(2, 2)
        a(f"s_load_dwordx16 {pk}, s[0:1], 0")
        a(f"s_load_dwordx4 {p2}, s[0:1], 64")
        a(f"s_load_dwordx2 {p3}, s[0:1], 80")
        a("s_cmp_ge_u32 s2, 256")
        a("s_cbranch_scc1 L_end")
        self.s_t = S(8, 2)
        st = self.s_t
        self.s_rb = S(); self.s_j = S(); self.s_w = S(); self.s_rb64 = S(); self.s_ct = S()
        self.s_so = S(); self.s_so2 = S(); self.s_cnt = S()
        if self.stamps:
            self.s_st = S(2, 2)
        a(f"s_and_b32 {st[0]}, s2, 7")
        a(f"s_lshr_b32 {st[1]}, s2, 3")
        a(f"s_lshr_b32 {st[2]}, {st[0]}, 1")
        a(f"s_lshl_b32 {self.s_rb}, {st[2]}, 2")
        a(f"s_lshr_b32 {st[3]}, {st[1]}, 3")
        a(f"s_add_u32 {self.s_rb}, {self.s_rb}, {st[3]}")
        a(f"s_and_b32 {st[3]}, {st[0]}, 1")
        a(f"s_lshl_b32 {self.s_j}, {st[3]}, 3")
        a(f"s_and_b32 {st[4]}, {st[1]}, 7")
        a(f"s_add_u32 {self.s_j}, {self.s_j}, {st[4]}")
        a(f"s_lshl_b32 {self.s_rb64}, {st[2]}, 3")
        a(f"s_lshr_b32 {st[4]}, {st[1]}, 2")
        a(f"s_add_u32 {self.s_rb64}, {self.s_rb64}, {st[4]}")
        a(f"s_lshl_b32 {self.s_ct}, {st[3]}, 2")
        a(f"s_and_b32 {st[4]}, {st[1]}, 3")
        a(f"s_add_u32 {self.s_ct}, {self.s_ct}, {st[4]}")
        self.v_l = V(); self.v_t = V(8, 2)
        vt = self.v_t
        a(f"v_lshrrev_b32 {vt[0]}, 6, v0")
        a(f"v_and_b32 {self.v_l}, 63, v0")
        a(f"v_readfirstlane_b32 {self.s_w}, {vt[0]}")
        if self.stamps:
            self.v_stamp = V()
            a(f"v_mov_b32 {self.v_stamp}, 0")
        a("s_waitcnt lgkmcnt(0)")
        self.r_x    = self.srd("x",    pk.sub(0, 2), 2048*640*2)
        self.r_wqkv = self.srd("wqkv", pk.sub(2, 2), 640*1920*2)
        self.r_wphi = self.srd("wphi", pk.sub(4, 2), 32*400*2)
        self.r_wo   = self.srd("wo",   pk.sub(6, 2), 640*640*2)
        self.r_wg   = self.srd("wg",   pk.sub(10, 2), 640*1536*2)
        self.r_wu   = self.srd("wu",   pk.sub(12, 2), 640*1536*2)
        self.r_wd   = self.srd("wd",   pk.sub(14, 2), 1536*640*2)
        self.r_out  = self.srd("out",  p2.sub(0, 2), 2048*640*2)
        self.r_dbg  = self.srd("dbg",  p2.sub(2, 2), 256)
        self.r_ws   = self.srd("ws",   p3, WS_BYTES)
        self.stamp("start")

    def finish(self):
        a = self.a
        if self.stamps:
            vt, st = self.v_t, self.s_t
            a(f"s_lshl_b32 {st[0]}, s2, 2")
            a(f"s_add_u32 {st[0]}, {st[0]}, {self.s_w}")
            a(f"s_lshl_b32 {st[0]}, {st[0]}, 8")
            a(f"s_add_u32 {st[0]}, {st[0]}, {WS_BYTES - 0x100000}")
            a(f"v_lshlrev_b32 {vt[0]}, 2, {self.v_l}")
            a(f"v_add_u32 {vt[0]}, {st[0]}, {vt[0]}")
            a(f"buffer_store_dword {self.v_stamp}, {vt[0]}, {self.r_ws}, 0 offen")
        a("s_waitcnt vmcnt(0)")
        a.label("L_end")
        a("s_endpgm")

    def dump_regs(self, regs, region=0):
        a, vt, st = self.a, self.v_t, self.s_t
        n = len(regs)
        a("s_nop 15"); a("s_nop 15")
        a(f"s_lshl_b32 {st[0]}, s2, 2")
        a(f"s_add_u32 {st[0]}, {st[0]}, {self.s_w}")
        a(f"s_mul_i32 {st[0]}, {st[0]}, {n*256}")
        a(f"s_add_u32 {st[0]}, {st[0]}, {DUMP_OFF + region}")
        a(f"v_lshlrev_b32 {vt[0]}, 2, {self.v_l}")
        a(f"v_add_u32 {vt[0]}, {st[0]}, {vt[0]}")
        for i, r in enumerate(regs):
            if i and i % 16 == 0: a(f"v_add_u32 {vt[0]}, 4096, {vt[0]}")
            a(f"buffer_store_dword {r}, {vt[0]}, {self.r_ws}, 0 offen offset:{256*(i%16)}")
        self.drain()

    def signal(self, sid, grp):
        a, st, vt = self.a, self.s_t, self.v_t
        l = a.newlabel("sig")
        a(f"s_cmp_lg_u32 {self.s_w}, 0")
        a(f"s_cbranch_scc1 {l}")
        a(f"s_lshl_b32 {st[0]}, {grp}, 8")
        a(f"s_add_u32 {st[0]}, {st[0]}, {CNT_OFF + sid*16*256}")
        a(f"v_mov_b32 {vt[0]}, {st[0]}")
        a(f"v_mov_b32 {vt[1]}, 1")
        a("s_mov_b64 exec, 1")
        a(f"buffer_atomic_add {vt[1]}, {vt[0]}, {self.r_ws}, 0 offen sc1")
        a("s_mov_b64 exec, -1")
        a.label(l)
    def poll(self, sid, grp, target=16):
        a, st, vt = self.a, self.s_t, self.v_t
        l = a.newlabel("pe"); lp = a.newlabel("pl")
        a(f"s_cmp_lg_u32 {self.s_w}, 0")
        a(f"s_cbranch_scc1 {l}")
        a(f"s_lshl_b32 {st[0]}, {grp}, 8")
        a(f"s_add_u32 {st[0]}, {st[0]}, {CNT_OFF + sid*16*256}")
        a(f"v_mov_b32 {vt[0]}, {st[0]}")
        a(f"s_mov_b32 {self.s_cnt}, 0")
        a.label(lp)
        a(f"buffer_load_dword {vt[1]}, {vt[0]}, {self.r_ws}, 0 offen sc1")
        a("s_waitcnt vmcnt(0)")
        a(f"v_readfirstlane_b32 {st[1]}, {vt[1]}")
        a(f"s_add_u32 {self.s_cnt}, {self.s_cnt}, 1")
        a(f"s_cmp_ge_u32 {st[1]}, {target}")
        a(f"s_cbranch_scc1 {l}")
        a(f"s_cmp_lt_u32 {self.s_cnt}, 200000")
        a(f"s_cbranch_scc1 {lp}")
        a.label(l)
        a("s_barrier")

    def build(self):
        from phases import run_phases
        self.prologue()
        run_phases(self)
        self.finish()
        lines = self.a.lines
        lines = post.hazard_pass_fast(lines, verbose=True)
        lines = post.align_pass(lines, verbose=True)
        body = "\n".join(lines) + "\n"
        nv = 256 + max(self.A.hi, 0)
        hdr = header([f"; @launch grid=(256,1,1) block=(256,1,1) lds=163840"],
                     comments=["fused pre-LN hedgehog linear attention + ReGLU block, one persistent kernel (generated by gen/gen.py)"])
        print("vgpr hi", self.V.hi, "agpr hi", self.A.hi, "sgpr hi", self.S.hi)
        return hdr + kernel_begin(KN) + body + kernel_desc(KN, 512 if self.A.hi else 256, 102, 256)

if __name__ == "__main__":
    import argparse
    ap = argparse.ArgumentParser()
    ap.add_argument("-o", default="sequential_preLN__linear_kernel_hedgehog__glu_gated_reglu__prompt.s")
    ap.add_argument("--stop", default=None)
    ap.add_argument("--dump", default=None)
    ap.add_argument("--stamps", action="store_true")
    args = ap.parse_args()
    g = Gen(stop_after=args.stop, dump=args.dump, stamps=args.stamps)
    txt = g.build()
    open(args.o, "w").write(txt)
    if args.stamps:
        open(args.o + ".stamps", "w").write("\n".join(g.stamp_names))
```

```python
from asmlib import *
from gen import *
import gen as G

SEL_LO = 0x00003f80
SEL_HI = 0x3f800000
ONES2  = 0x3f803f80

P1_SLOT = 32768
T0_OFF  = 102400
T1_OFF  = 118784
VT_OFF  = 135168
KVX_OFF = 122880
OT_OFF  = 143360
OTJ_OFF = OT_OFF + 10240
CS_OFF  = 161792

def capture(g, fn):
    old = g.a
    g.a = Asm(); g.a.uid = old.uid
    fn()
    lines = g.a.lines
    old.uid = g.a.uid
    g.a = old
    return lines

def interleave(g, main, extra, every, start=0):
    extra = list(extra); n = 0
    for l in main:
        g.a.lines.append(l)
        s = l.strip()
        if s and not s.endswith(":") and not s.startswith(";"):
            n += 1
            if n >= start and (n - start) % every == 0 and extra:
                for e in extra.pop(0): g.a(e)
    for grp in extra:
        for e in grp: g.a(e)

def colsum_addr(g, v_out_off, kind, seg_of=None):
    a, st, vt, vl = g.a, g.s_t, g.v_t, g.v_l
    a(f"v_lshrrev_b32 {vt[1]}, 4, {vl}")
    a(f"v_and_b32 {vt[2]}, 15, {vl}")
    a(f"s_mul_i32 {st[0]}, {g.s_rb}, 40")
    a(f"v_add_u32 {vt[0]}, {st[0]}, {vt[1]}")
    a(f"s_lshl_b32 {st[2]}, {g.s_j}, 4")
    a(f"s_add_u32 {st[2]}, {st[2]}, {g.s_rb}")
    a(f"v_lshlrev_b32 {vt[6]}, 5, {vt[2]}")
    a(f"v_cmp_eq_u32 vcc, 0, {vt[1]}")
    a(f"v_mov_b32 {vt[7]}, {OOB:#x}")
    a(f"v_cndmask_b32 {vt[6]}, {vt[7]}, {vt[6]}, vcc")
    if kind == "qkv":
        seg_of(vt[4], vt[2], vt[5])
        a(f"v_mul_u32_u24 {vt[0]}, 3840, {vt[0]}")
        a(f"s_mul_i32 {st[1]}, {g.s_j}, 80")
        a(f"v_add3_u32 {vt[0]}, {vt[0]}, {vt[4]}, {st[1]}")
        a(f"s_lshl_b32 {st[2]}, {st[2]}, 9")
        a(f"s_add_u32 {st[2]}, {st[2]}, {CSQ_OFF}")
    else:
        a(f"v_mul_u32_u24 {vt[0]}, 3072, {vt[0]}")
        a(f"s_mul_i32 {st[1]}, {g.s_j}, 192")
        a(f"v_lshlrev_b32 {vt[4]}, 4, {vt[2]}")
        a(f"v_add3_u32 {vt[0]}, {vt[0]}, {vt[4]}, {st[1]}")
        a(f"v_cmp_gt_u32 vcc, 12, {vt[2]}")
        a(f"v_cndmask_b32 {vt[0]}, {vt[7]}, {vt[0]}, vcc")
        a(f"s_lshl_b32 {st[2]}, {st[2]}, 1")
        a(f"s_add_u32 {st[2]}, {st[2]}, {g.s_w}")
        a(f"s_sub_u32 {st[2]}, {st[2]}, 2")
        a(f"s_lshl_b32 {st[2]}, {st[2]}, 9")
        a(f"s_add_u32 {st[2]}, {st[2]}, {CSGU_OFF}")
    a(f"v_add_u32 {v_out_off}, {st[2]}, {vt[6]}")

def colsum_compute(g, sd, cs8, ct8, v_out_off):
    a = g.a
    for e in range(8): a(f"v_mov_b32 {cs8[e]}, 0")
    for i in range(10):
        for w in range(4):
            a(f"v_dot2c_f32_bf16 {cs8[2*w]}, {g.s_sel_lo}, {sd[4*i+w]}")
            a(f"v_dot2c_f32_bf16 {cs8[2*w+1]}, {g.s_sel_hi}, {sd[4*i+w]}")
    for sw in ("v_permlane32_swap_b32", "v_permlane16_swap_b32"):
        for e in range(8): a(f"v_mov_b32 {ct8[e]}, {cs8[e]}")
        for e in range(8): a(f"{sw} {ct8[e]}, {cs8[e]}")
        for e in range(8): a(f"v_add_f32 {cs8[e]}, {cs8[e]}, {ct8[e]}")
    a(f"buffer_store_dwordx4 {cs8.sub(0,4)}, {v_out_off}, {g.r_ws}, 0 offen sc1")
    a(f"buffer_store_dwordx4 {cs8.sub(4,4)}, {v_out_off}, {g.r_ws}, 0 offen offset:16 sc1")

def touch_rows(g, srd, pitch, rows_per_wg, lines_per_row, col_byte_per_xb, magic, n_instr, first_instr=0, dst=None):
    st, vt, vl = g.s_t, g.v_t, g.v_l
    out = []
    for i in range(first_instr, first_instr + n_instr):
        L = [f"v_add_u32 {vt[0]}, {64*i}, {vl}",
             f"s_mov_b32 {st[5]}, {magic:#x}",
             f"v_mul_hi_u32 {vt[1]}, {vt[0]}, {st[5]}",
             f"v_mul_u32_u24 {vt[2]}, {lines_per_row}, {vt[1]}",
             f"v_sub_u32 {vt[2]}, {vt[0]}, {vt[2]}",
             f"s_mul_i32 {st[5]}, {g.s_q}, {rows_per_wg}",
             f"v_cmp_gt_u32 vcc, {rows_per_wg}, {vt[1]}",
             f"v_add_u32 {vt[1]}, {st[5]}, {vt[1]}",
             f"v_mul_u32_u24 {vt[1]}, {pitch}, {vt[1]}",
             f"v_lshl_add_u32 {vt[1]}, {vt[2]}, 7, {vt[1]}",
             f"s_mul_i32 {st[5]}, {g.s_xb}, {col_byte_per_xb}",
             f"v_add_u32 {vt[1]}, {st[5]}, {vt[1]}",
             f"v_mov_b32 {vt[2]}, {OOB:#x}",
             f"v_cndmask_b32 {vt[1]}, {vt[2]}, {vt[1]}, vcc",
             f"buffer_load_dword {g.v_dummy}, {vt[1]}, {srd}, 0 offen"]
        out.append(L)
    return out

def touch_wave(g, srd, pitch, rows_per_wg, lines_per_row, col_bytes, magic):
    a, st, vt, vl = g.a, g.s_t, g.v_t, g.v_l
    a(f"s_lshl_b32 {st[5]}, {g.s_w}, 6")
    a(f"v_add_u32 {vt[0]}, {st[5]}, {vl}")
    a(f"s_mov_b32 {st[5]}, {magic:#x}")
    a(f"v_mul_hi_u32 {vt[1]}, {vt[0]}, {st[5]}")
    a(f"v_mul_u32_u24 {vt[2]}, {lines_per_row}, {vt[1]}")
    a(f"v_sub_u32 {vt[2]}, {vt[0]}, {vt[2]}")
    a(f"s_mul_i32 {st[5]}, {g.s_q}, {rows_per_wg}")
    a(f"v_cmp_gt_u32 vcc, {rows_per_wg}, {vt[1]}")
    a(f"v_add_u32 {vt[1]}, {st[5]}, {vt[1]}")
    a(f"v_mul_u32_u24 {vt[1]}, {pitch}, {vt[1]}")
    a(f"v_lshl_add_u32 {vt[1]}, {vt[2]}, 7, {vt[1]}")
    a(f"s_mul_i32 {st[5]}, {g.s_xb}, {col_bytes}")
    a(f"v_add_u32 {vt[1]}, {st[5]}, {vt[1]}")
    a(f"v_mov_b32 {vt[2]}, {OOB:#x}")
    a(f"v_cndmask_b32 {vt[1]}, {vt[2]}, {vt[1]}, vcc")
    a(f"buffer_load_dword {g.v_dummy}, {vt[1]}, {srd}, 0 offen")
    g.vm.add("touch")

def p1_touch_w(g, i_expr_s):
    a, st, vt, vl = g.a, g.s_t, g.v_t, g.v_l
    a(f"v_and_b32 {vt[0]}, 15, {vl}")
    a(f"v_min_u32 {vt[1]}, 14, {vt[0]}")
    a(f"v_lshlrev_b32 {vt[1]}, 7, {vt[1]}")
    a(f"v_cmp_le_u32 vcc, 5, {vt[0]}")
    a(f"v_add_u32 {vt[2]}, 640, {vt[1]}")
    a(f"v_cndmask_b32 {vt[1]}, {vt[1]}, {vt[2]}, vcc")
    a(f"v_cmp_le_u32 vcc, 10, {vt[0]}")
    a(f"v_add_u32 {vt[2]}, 640, {vt[1]}")
    a(f"v_cndmask_b32 {vt[1]}, {vt[1]}, {vt[2]}, vcc")
    a(f"v_lshrrev_b32 {vt[2]}, 5, {vl}")
    a(f"v_lshlrev_b32 {vt[2]}, 6, {vt[2]}")
    a(f"v_bfe_u32 {vt[3]}, {vl}, 4, 1")
    a(f"v_add_u32 {vt[2]}, {vt[2]}, {vt[3]}")
    a(f"s_lshl_b32 {st[0]}, {g.s_q}, 1")
    a(f"s_lshl_b32 {st[1]}, {i_expr_s}, 7")
    a(f"s_add_u32 {st[0]}, {st[0]}, {st[1]}")
    a(f"v_add_u32 {vt[2]}, {st[0]}, {vt[2]}")
    a(f"v_mul_u32_u24 {vt[2]}, 3840, {vt[2]}")
    a(f"s_mul_i32 {st[1]}, {g.s_xb}, 640")
    a(f"v_add3_u32 {vt[2]}, {vt[2]}, {vt[1]}, {st[1]}")
    a(f"buffer_load_dword {g.v_dummy}, {vt[2]}, {g.r_wqkv}, 0 offen")

def p1_touch_x(g, i_const):
    a, st, vt, vl = g.a, g.s_t, g.v_t, g.v_l
    a(f"s_and_b32 {st[0]}, {g.s_q}, 7")
    a(f"s_lshl_b32 {st[0]}, {st[0]}, 4")
    a(f"s_lshl_b32 {st[1]}, {g.s_rb}, 7")
    a(f"s_add_u32 {st[0]}, {st[0]}, {st[1]}")
    a(f"v_and_b32 {vt[0]}, 15, {vl}")
    a(f"v_add_u32 {vt[0]}, {st[0]}, {vt[0]}")
    a(f"v_mul_u32_u24 {vt[0]}, 1280, {vt[0]}")
    a(f"v_lshrrev_b32 {vt[1]}, 4, {vl}")
    a(f"v_add_u32 {vt[1]}, {4*i_const}, {vt[1]}")
    a(f"v_cmp_gt_u32 vcc, 10, {vt[1]}")
    a(f"v_lshl_add_u32 {vt[0]}, {vt[1]}, 7, {vt[0]}")
    a(f"v_mov_b32 {vt[3]}, {OOB:#x}")
    a(f"v_cndmask_b32 {vt[0]}, {vt[3]}, {vt[0]}, vcc")
    a(f"buffer_load_dword {g.v_dummy}, {vt[0]}, {g.r_x}, 0 offen")

def early_touch(g):
    a, st, vt, vl, S = g.a, g.s_t, g.v_t, g.v_l, g.S
    l0 = a.newlabel("t0"); l3 = a.newlabel("t3"); le = a.newlabel("te")
    a(f"s_cmp_eq_u32 {g.s_w}, 0")
    a(f"s_cbranch_scc1 {l0}")
    a(f"s_cmp_eq_u32 {g.s_w}, 3")
    a(f"s_cbranch_scc1 {l3}")
    a(f"s_sub_u32 {st[2]}, {g.s_w}, 1")
    p1_touch_w(g, st[2])
    a(f"s_branch {le}")
    a.label(l0)
    p1_touch_x(g, 0)
    a(f"s_branch {le}")
    a.label(l3)
    s_pc = S(2, 2)
    a(f"s_getpc_b64 {s_pc}")
    a.label("L_pc")
    a(f"s_mul_i32 {st[0]}, {g.s_q}, 12")
    a(f"v_add_u32 {vt[0]}, {st[0]}, {vl}")
    a(f"v_lshlrev_b32 {vt[0]}, 7, {vt[0]}")
    a(f"s_mov_b32 {st[0]}, L_end-L_pc")
    a(f"v_cmp_gt_u32 vcc, {st[0]}, {vt[0]}")
    a(f"v_cndmask_b32 {vt[0]}, 0, {vt[0]}, vcc")
    a(f"s_mov_b64 exec, 0xfff")
    a(f"global_load_dword {g.v_dummy}, {vt[0]}, {s_pc}")
    a(f"s_mov_b64 exec, -1")
    a.label(le)
    g.vm.add("touch", 1)
    g.stamp("touch")

def late_touch(g):
    a, st = g.a, g.s_t
    l0 = a.newlabel("u0"); le = a.newlabel("ue"); l3 = a.newlabel("u3")
    a(f"s_cmp_eq_u32 {g.s_w}, 0")
    a(f"s_cbranch_scc1 {l0}")
    a(f"s_add_u32 {st[2]}, {g.s_w}, 1")
    p1_touch_w(g, st[2])
    a(f"s_cmp_eq_u32 {g.s_w}, 3")
    a(f"s_cbranch_scc0 {le}")
    p1_touch_x(g, 2)
    a(f"s_branch {le}")
    a.label(l0)
    p1_touch_x(g, 1)
    a.label(le)
    g.vm.add("touch", 1)

def p1(g):
    a, S, V, A = g.a, g.S, g.V, g.A
    st, vt, vl = g.s_t, g.v_t, g.v_l
    s_hw = S(); s_wsr = S(); g.s_hw, g.s_wsr = s_hw, s_wsr
    s_m0x = S(); s_m0w = S(); s_sel_lo = S(); s_sel_hi = S(); g.s_sel_lo, g.s_sel_hi = s_sel_lo, s_sel_hi
    a(f"s_and_b32 {s_hw}, {g.s_w}, 1")
    a(f"s_lshr_b32 {s_wsr}, {g.s_w}, 1")
    a(f"s_mov_b32 {s_sel_lo}, {SEL_LO:#x}")
    a(f"s_mov_b32 {s_sel_hi}, {SEL_HI:#x}")
    phi0 = V(4, 2); phi1q = V(4, 2); phi1k = V(4, 2)
    g.phiq = [V(12, 2), V(12, 2)]
    g.v_wr = V(6)
    g.s_wm0 = S(); g.s_wso = S()
    mark = V.mark()
    acc = V(64, 4)
    blk = V(64, 4)
    stt = [V(2, 2), V(2, 2)]
    ptmp = V(12)
    v_pb = V(2)
    mark_loop = V.mark()
    v_dx = V(4); v_dw = V(4)
    a(f"s_lshl_b32 {st[0]}, {g.s_rb}, 7")
    a(f"s_lshl_b32 {st[1]}, {g.s_w}, 5")
    a(f"s_add_u32 {st[0]}, {st[0]}, {st[1]}")
    a(f"v_lshrrev_b32 {vt[0]}, 3, {vl}")
    a(f"v_add_u32 {vt[0]}, {st[0]}, {vt[0]}")
    a(f"v_mul_u32_u24 {vt[0]}, 1280, {vt[0]}")
    a(f"v_lshrrev_b32 {vt[1]}, 4, {vl}")
    a(f"v_and_b32 {vt[2]}, 7, {vl}")
    a(f"v_xor_b32 {vt[3]}, {vt[1]}, {vt[2]}")
    a(f"v_xor_b32 {vt[4]}, 4, {vt[3]}")
    for ii in range(4):
        a(f"v_lshl_add_u32 {v_dx[ii]}, {vt[3 + (ii & 1)]}, 4, {vt[0]}")
        if ii: a(f"v_add_u32 {v_dx[ii]}, {ii*(8*1280 - 1024)}, {v_dx[ii]}")
    a(f"s_lshl_b32 {st[0]}, {g.s_w}, 4")
    a(f"v_add_u32 {vt[0]}, {st[0]}, {vt[1]}")
    a(f"v_mul_u32_u24 {vt[0]}, 3840, {vt[0]}")
    a(f"v_and_b32 {vt[2]}, 15, {vl}")
    a(f"v_lshlrev_b32 {vt[3]}, 2, {vt[1]}")
    a(f"v_xor_b32 {vt[3]}, {vt[3]}, {vt[2]}")
    def seg_of(dst, c, tmp):
        a(f"v_min_u32 {dst}, 14, {c}")
        a(f"v_lshlrev_b32 {dst}, 4, {dst}")
        a(f"v_cmp_le_u32 vcc, 5, {c}")
        a(f"v_add_u32 {tmp}, 1200, {dst}")
        a(f"v_cndmask_b32 {dst}, {dst}, {tmp}, vcc")
        a(f"v_cmp_le_u32 vcc, 10, {c}")
        a(f"v_add_u32 {tmp}, 1200, {dst}")
        a(f"v_cndmask_b32 {dst}, {dst}, {tmp}, vcc")
    seg_of(vt[4], vt[3], vt[5])
    a(f"s_mul_i32 {st[1]}, {g.s_j}, 80")
    a(f"v_add3_u32 {v_dw[0]}, {vt[0]}, {vt[4]}, {st[1]}")
    for ii in range(1, 4):
        a(f"v_add_u32 {v_dw[ii]}, {ii*(4*3840 - 1024)}, {v_dw[0]}")
    a(f"s_lshl_b32 {s_m0x}, {g.s_w}, 12")
    a(f"s_add_u32 {s_m0w}, {s_m0x}, 16384")
    def dma_stage(stg):
        slot = stg % 4
        L = [[f"s_mov_b32 {g.s_so}, {stg*128}", f"s_add_u32 m0, {s_m0x}, {slot*P1_SLOT}",
              f"buffer_load_dwordx4 {v_dx[0]}, {g.r_x}, {g.s_so} offen lds"]]
        for ii in range(1, 4):
            L.append([f"buffer_load_dwordx4 {v_dx[ii]}, {g.r_x}, {g.s_so} offen offset:{1024*ii} lds"])
        L.append([f"s_mov_b32 {g.s_so2}, {stg*64*3840}", f"s_add_u32 m0, {s_m0w}, {slot*P1_SLOT}",
                  f"buffer_load_dwordx4 {v_dw[0]}, {g.r_wqkv}, {g.s_so2} offen lds"])
        for ii in range(1, 4):
            L.append([f"buffer_load_dwordx4 {v_dw[ii]}, {g.r_wqkv}, {g.s_so2} offen offset:{1024*ii} lds"])
        return L
    def issue_stage(stg):
        for grp in dma_stage(stg):
            for l in grp: a(l)
            g.vm.add(("d", stg))
    g.stamp("pre_st0")
    issue_stage(0)
    g.stamp("st0")
    a(f"s_or_b32 {st[0]}, s2, {g.s_w}")
    a(f"s_cmp_eq_u32 {st[0]}, 0")
    a(f"s_cselect_b32 {st[0]}, {CNT_OFF}, {OOB:#x}")
    a(f"v_lshlrev_b32 {vt[0]}, 8, {vl}")
    a(f"v_add_u32 {vt[0]}, {st[0]}, {vt[0]}")
    a(f"v_add_u32 {vt[1]}, 16384, {vt[0]}")
    a(f"v_mov_b32 {vt[2]}, 0")
    a(f"buffer_store_dword {vt[2]}, {vt[0]}, {g.r_ws}, 0 offen sc1"); g.vm.add("zero")
    a(f"buffer_store_dword {vt[2]}, {vt[1]}, {g.r_ws}, 0 offen sc1"); g.vm.add("zero")
    sd = acc.sub(0, 40)
    v_s0o = V()
    L_stats = a.newlabel("stats"); L_ld = a.newlabel("s0ld")
    a(f"v_mov_b32 {v_s0o}, {OOB:#x}")
    a(f"s_cmp_eq_u32 {g.s_w}, 3")
    a(f"s_cbranch_scc1 {L_ld}")
    a(f"s_cmp_eq_u32 {g.s_w}, 1")
    a(f"s_cbranch_scc0 {L_stats}")
    colsum_addr(g, v_s0o, "qkv", seg_of)
    for i in range(10):
        a(f"s_mov_b32 {g.s_so}, {i*4*3840}")
        a(f"buffer_load_dwordx4 {sd.sub(4*i,4)}, {vt[0]}, {g.r_wqkv}, {g.s_so} offen")
    a(f"s_branch {L_ld}")
    a.label(L_stats)
    a(f"s_lshl_b32 {st[0]}, {g.s_rb}, 7")
    a(f"s_lshl_b32 {st[1]}, {g.s_j}, 3")
    a(f"s_add_u32 {st[0]}, {st[0]}, {st[1]}")
    a(f"s_lshl_b32 {st[1]}, {g.s_w}, 1")
    a(f"s_add_u32 {st[0]}, {st[0]}, {st[1]}")
    a(f"v_lshrrev_b32 {vt[0]}, 4, {vl}")
    a(f"v_add_u32 {vt[0]}, {st[0]}, {vt[0]}")
    a(f"v_and_b32 {vt[2]}, 15, {vl}")
    a(f"v_lshlrev_b32 {vt[4]}, 3, {vt[0]}")
    a(f"v_add_u32 {vt[4]}, {STATX_OFF}, {vt[4]}")
    a(f"v_mov_b32 {vt[7]}, {OOB:#x}")
    a(f"v_cmp_eq_u32 vcc, 0, {vt[2]}")
    a(f"v_cndmask_b32 {v_s0o}, {vt[7]}, {vt[4]}, vcc")
    a(f"v_mul_u32_u24 {vt[0]}, 1280, {vt[0]}")
    a(f"v_lshl_add_u32 {vt[0]}, {vt[2]}, 4, {vt[0]}")
    for i in range(5):
        a(f"buffer_load_dwordx4 {sd.sub(4*i,4)}, {vt[0]}, {g.r_x}, 0 offen offset:{256*i}")
    a.label(L_ld)
    g.stamp("role")
    issue_stage(1)
    g.stamp("st1")
    issue_stage(2)
    late_touch(g)
    g.stamp("st2")
    v_bx = [V(4), V(4)]; v_aw = [V(2), V(2)]
    a(f"v_and_b32 {vt[0]}, 31, {vl}")
    a(f"s_lshl_b32 {st[0]}, {s_wsr}, 6")
    a(f"v_add_u32 {vt[1]}, {st[0]}, {vt[0]}")
    a(f"v_lshlrev_b32 {vt[1]}, 7, {vt[1]}")
    a(f"v_bfe_u32 {vt[2]}, {vl}, 1, 3")
    a(f"v_lshrrev_b32 {vt[3]}, 5, {vl}")
    a(f"v_xor_b32 {vt[2]}, {vt[2]}, {vt[3]}")
    for u in range(4):
        a(f"v_xor_b32 {vt[4]}, {2*u}, {vt[2]}")
        a(f"v_lshl_add_u32 {v_bx[0][u]}, {vt[4]}, 4, {vt[1]}")
        a(f"v_add_u32 {v_bx[1][u]}, 65536, {v_bx[0][u]}")
    a(f"v_lshrrev_b32 {vt[0]}, 5, {vl}")
    a(f"v_bfe_u32 {vt[1]}, {vl}, 2, 2")
    a(f"v_lshl_add_u32 {vt[0]}, {vt[0]}, 3, {vt[1]}")
    a(f"v_lshlrev_b32 {vt[0]}, 8, {vt[0]}")
    a(f"v_add_u32 {vt[0]}, 16384, {vt[0]}")
    a(f"v_and_b32 {vt[2]}, 3, {vl}")
    a(f"v_bfe_u32 {vt[3]}, {vl}, 4, 1")
    a(f"s_mul_i32 {st[0]}, {s_hw}, 5")
    a(f"v_lshlrev_b32 {vt[4]}, 3, {vt[2]}")
    a(f"s_mov_b32 {st[1]}, 0x15150e04")
    a(f"v_lshrrev_b32_e64 {vt[5]}, {vt[4]}, {st[1]}")
    a(f"v_and_b32 {vt[5]}, 0xff, {vt[5]}")
    a(f"s_mov_b32 {st[1]}, 0x18171614")
    a(f"v_lshrrev_b32_e64 {vt[7]}, {vt[4]}, {st[1]}")
    a(f"v_and_b32 {vt[7]}, 0xff, {vt[7]}")
    a(f"v_cmp_eq_u32 vcc, 1, {vt[3]}")
    a(f"v_cndmask_b32 {vt[4]}, {vt[2]}, {vt[5]}, vcc")
    a(f"v_add_u32 {vt[4]}, {st[0]}, {vt[4]}")
    a(f"v_add_u32 {vt[5]}, 10, {vt[2]}")
    a(f"v_cndmask_b32 {vt[5]}, {vt[5]}, {vt[7]}, vcc")
    a(f"v_add_u32 {vt[5]}, {st[0]}, {vt[5]}")
    a(f"v_lshlrev_b32 {vt[6]}, 3, {vt[1]}")
    for nb in range(2):
        a(f"v_xor_b32 {vt[7]}, {vt[4+nb]}, {vt[6]}")
        a(f"v_lshl_add_u32 {v_aw[0][nb]}, {vt[7]}, 3, {vt[0]}")
        a(f"v_add_u32 {v_aw[1][nb]}, 65536, {v_aw[0][nb]}")
    g.stamp("issued")
    g.wait(g.vm.count_after("zero"))
    a(f"s_or_b32 {st[0]}, s2, {g.s_w}")
    a(f"s_cmp_eq_u32 {st[0]}, 0")
    a(f"s_cselect_b32 {st[0]}, 0, {OOB:#x}")
    a(f"v_mov_b32 {vt[0]}, {st[0]}")
    a(f"v_mov_b32 {vt[1]}, 1")
    a("s_mov_b64 exec, 1")
    a(f"buffer_store_dword {vt[1]}, {vt[0]}, {g.r_dbg}, 0 offen sc1"); g.vm.add("flagst")
    a("s_mov_b64 exec, -1")
    L_st2 = a.newlabel("st2"); L_s0e = a.newlabel("s0e")
    g.stamp("zerowait")
    n_after = 16 + 1
    a(f"s_cmp_eq_u32 {g.s_w}, 3")
    a(f"s_cbranch_scc1 {L_s0e}")
    a(f"s_waitcnt vmcnt({n_after})")
    a(f"s_cmp_eq_u32 {g.s_w}, 1")
    a(f"s_cbranch_scc0 {L_st2}")
    cs8 = blk.sub(16, 8); ct8 = blk.sub(24, 8)
    colsum_compute(g, sd, cs8, ct8, v_s0o)
    a(f"s_branch {L_s0e}")
    a.label(L_st2)
    s_ones = st[4]
    a(f"s_mov_b32 {s_ones}, {ONES2:#x}")
    for e in range(4): a(f"v_mov_b32 {cs8[e]}, 0")
    for i in range(20):
        a(f"v_dot2c_f32_bf16 {cs8[i%2]}, {s_ones}, {sd[i]}")
        a(f"v_dot2c_f32_bf16 {cs8[2+i%2]}, {sd[i]}, {sd[i]}")
    a(f"v_add_f32 {cs8[0]}, {cs8[0]}, {cs8[1]}")
    a(f"v_add_f32 {cs8[2]}, {cs8[2]}, {cs8[3]}")
    for ctl in ("quad_perm:[1,0,3,2]", "quad_perm:[2,3,0,1]", "row_half_mirror", "row_mirror"):
        a(f"v_add_f32_dpp {cs8[0]}, {cs8[0]}, {cs8[0]} {ctl} row_mask:0xf bank_mask:0xf")
        a(f"v_add_f32_dpp {cs8[2]}, {cs8[2]}, {cs8[2]} {ctl} row_mask:0xf bank_mask:0xf")
    a(f"v_mul_f32 {cs8[0]}, {f32hex(1/640)}, {cs8[0]}")
    a(f"v_mul_f32 {cs8[2]}, {f32hex(1/640)}, {cs8[2]}")
    a(f"v_fma_f32 {cs8[2]}, -{cs8[0]}, {cs8[0]}, {cs8[2]}")
    a(f"v_max_f32 {cs8[2]}, 0, {cs8[2]}")
    a(f"v_add_f32 {cs8[2]}, {f32hex(1e-5)}, {cs8[2]}")
    a(f"v_rsq_f32 {cs8[1]}, {cs8[2]}")
    a(f"buffer_store_dwordx2 {cs8.sub(0,2)}, {v_s0o}, {g.r_ws}, 0 offen sc1")
    a.label(L_s0e)
    g.stamp("s0cmp")
    v_flag = V()
    a(f"v_mov_b32 {vt[0]}, 0")
    a(f"buffer_load_dword {v_flag}, {vt[0]}, {g.r_dbg}, 0 offen sc1"); g.vm.add("flagld")
    fa = [blk.sub(0, 8), blk.sub(8, 8)]; fb = [blk.sub(16, 8), blk.sub(24, 8)]
    for i in range(64): a(f"v_mov_b32 {acc[i]}, 0")
    def ACC(nb, sb): return acc.sub(16*(2*nb+sb), 16)
    def reads(t):
        stg, u = t >> 2, t & 3
        slot = stg % 4; grp, sl = slot >> 1, slot & 1
        p = t & 1
        def ra(nb, th): return f"ds_read_b64_tr_b16 {fa[p].sub(4*nb+2*th,2)}, {v_aw[grp][nb]} offset:{sl*P1_SLOT + (16*u+4*th)*256}"
        def rbx(sb): return f"ds_read_b128 {fb[p].sub(4*sb,4)}, {v_bx[grp][u]} offset:{sl*P1_SLOT + sb*4096}"
        return [ra(0,0), ra(0,1), rbx(0), rbx(1), ra(1,0), ra(1,1)]
    g.stamp("p1_pro")
    g.waitvm(("d", 0))
    a("s_barrier")
    g.stamp("p1_first")
    for l in reads(0): a(l)
    v_cnt = V(2); v_cadr = V(2)
    csl = blk.sub(32, 32)
    v_sta = V(); v_csa = V()
    pend = [(grp, ("d", 3)) for grp in dma_stage(3)]
    for t in range(40):
        stg, u = t >> 2, t & 3
        p = t & 1
        bar = (u == 1 and stg + 1 < 10)
        vmn = None
        if bar:
            vmn = g.vm.wait(("d", stg+1))
        rd = reads(t+1) if t + 1 < 40 else []
        if bar and stg >= 1 and stg + 3 < 10:
            pend += [(grp, ("d", stg+3)) for grp in dma_stage(stg+3)]
        order = [(0,0),(0,1),(1,0),(1,1)]
        for m, (nb, sb) in enumerate(order):
            if m == 0:
                g.wait(vmn, 3)
                if bar:
                    a("s_barrier")
                    if stg == 2:
                        l = a.newlabel("s0sig"); lp = a.newlabel("s0fl"); lo = a.newlabel("s0ok")
                        a(f"s_cmp_lg_u32 {g.s_w}, 0")
                        a(f"s_cbranch_scc1 {l}")
                        a(f"v_readfirstlane_b32 {st[0]}, {v_flag}")
                        a(f"s_mov_b32 {g.s_cnt}, 0")
                        a(f"s_cmp_eq_u32 {st[0]}, 1")
                        a(f"s_cbranch_scc1 {lo}")
                        a.label(lp)
                        a(f"v_mov_b32 {vt[0]}, 0")
                        a(f"buffer_load_dword {v_flag}, {vt[0]}, {g.r_dbg}, 0 offen sc1")
                        a("s_waitcnt vmcnt(0)")
                        a(f"v_readfirstlane_b32 {st[0]}, {v_flag}")
                        a(f"s_add_u32 {g.s_cnt}, {g.s_cnt}, 1")
                        a(f"s_cmp_eq_u32 {st[0]}, 1")
                        a(f"s_cbranch_scc1 {lo}")
                        a(f"s_cmp_lt_u32 {g.s_cnt}, 200000")
                        a(f"s_cbranch_scc1 {lp}")
                        a.label(lo)
                        a(f"s_lshl_b32 {st[0]}, {g.s_rb}, 8")
                        a(f"s_add_u32 {st[0]}, {st[0]}, {CNT_OFF + S0R*4096}")
                        a(f"s_lshl_b32 {st[1]}, {g.s_j}, 8")
                        a(f"s_add_u32 {st[1]}, {st[1]}, {CNT_OFF + S0C*4096}")
                        a(f"v_mov_b32 {vt[0]}, {st[0]}")
                        a(f"v_mov_b32 {vt[1]}, {st[1]}")
                        a(f"v_mov_b32 {vt[2]}, 1")
                        a("s_mov_b64 exec, 1")
                        a(f"buffer_atomic_add {vt[2]}, {vt[0]}, {g.r_ws}, 0 offen sc1")
                        a(f"buffer_atomic_add {vt[2]}, {vt[1]}, {g.r_ws}, 0 offen sc1")
                        a("s_mov_b64 exec, -1")
                        a.label(l)
            elif m == 1 and t + 1 < 40:
                g.wait(None, 3)
            elif m == 1:
                g.wait(None, 0)
            a(f"v_mfma_f32_32x32x16_bf16 {ACC(nb,sb)}, {fa[p].sub(4*nb,4)}, {fb[p].sub(4*sb,4)}, {ACC(nb,sb)}")
            if m < 2:
                for l in rd[3*m:3*m+3]: a(l)
            else:
                if pend:
                    grp, tag = pend.pop(0)
                    for l in grp: a(l)
                    g.vm.add(tag)
        if t == 20:
            a(f"s_lshl_b32 {st[0]}, {g.s_rb}, 8")
            a(f"s_add_u32 {st[0]}, {st[0]}, {CNT_OFF + S0R*4096}")
            a(f"s_lshl_b32 {st[1]}, {g.s_j}, 8")
            a(f"s_add_u32 {st[1]}, {st[1]}, {CNT_OFF + S0C*4096}")
            a(f"v_mov_b32 {v_cadr[0]}, {st[0]}")
            a(f"v_mov_b32 {v_cadr[1]}, {st[1]}")
            a(f"buffer_load_dword {v_cnt[0]}, {v_cadr[0]}, {g.r_ws}, 0 offen sc1")
            a(f"buffer_load_dword {v_cnt[1]}, {v_cadr[1]}, {g.r_ws}, 0 offen sc1")
            g.vm.add("s0cnt", 2)
        if t in (4, 9, 16, 36): g.stamp(f"p1_t{t}")
        if t == 25:
            g.stamp("p1_t25a")
            lp = a.newlabel("s0w"); lo = a.newlabel("s0wd")
            g.waitvm("s0cnt")
            a(f"s_mov_b32 {g.s_cnt}, 0")
            a.label(lp)
            a(f"v_min_u32 {vt[0]}, {v_cnt[0]}, {v_cnt[1]}")
            a(f"s_add_u32 {g.s_cnt}, {g.s_cnt}, 1")
            a(f"v_readfirstlane_b32 {st[0]}, {vt[0]}")
            a(f"s_cmp_ge_u32 {st[0]}, 16")
            a(f"s_cbranch_scc1 {lo}")
            a(f"buffer_load_dword {v_cnt[0]}, {v_cadr[0]}, {g.r_ws}, 0 offen sc1")
            a(f"buffer_load_dword {v_cnt[1]}, {v_cadr[1]}, {g.r_ws}, 0 offen sc1")
            a("s_waitcnt vmcnt(0)")
            a(f"s_cmp_lt_u32 {g.s_cnt}, 200000")
            a(f"s_cbranch_scc1 {lp}")
            a.label(lo)
            g.stamp("p1_t25b")
            a(f"s_lshl_b32 {st[0]}, {g.s_rb}, 7")
            a(f"s_lshl_b32 {st[1]}, {s_wsr}, 6")
            a(f"s_add_u32 {st[0]}, {st[0]}, {st[1]}")
            a(f"v_and_b32 {v_sta}, 31, {vl}")
            a(f"v_add_u32 {v_sta}, {st[0]}, {v_sta}")
            a(f"v_lshlrev_b32 {v_sta}, 3, {v_sta}")
            a(f"v_add_u32 {v_sta}, {STATX_OFF}, {v_sta}")
            a(f"buffer_load_dwordx2 {stt[0]}, {v_sta}, {g.r_ws}, 0 offen sc1")
            a(f"buffer_load_dwordx2 {stt[1]}, {v_sta}, {g.r_ws}, 0 offen offset:256 sc1")
            a(f"s_lshl_b32 {st[0]}, {g.s_j}, 13")
            a(f"s_add_u32 {st[0]}, {st[0]}, {CSQ_OFF}")
            a(f"v_lshlrev_b32 {v_csa}, 3, {vl}")
            a(f"v_add_u32 {v_csa}, {st[0]}, {v_csa}")
            for i in range(16):
                if i == 8: a(f"v_add_u32 {v_csa}, 4096, {v_csa}")
                a(f"buffer_load_dwordx2 {csl.sub(2*i,2)}, {v_csa}, {g.r_ws}, 0 offen offset:{512*(i%8)} sc1")
            g.vm.add("s0data", 18)
        if t == 28:
            a(f"v_and_b32 {vt[0]}, 31, {vl}")
            a(f"v_lshrrev_b32 {vt[1]}, 3, {vt[0]}")
            a(f"v_and_b32 {vt[2]}, 3, {vt[0]}")
            a(f"v_lshl_add_u32 {vt[1]}, {vt[1]}, 2, {vt[2]}")
            a(f"v_bfe_u32 {vt[2]}, {vt[0]}, 2, 1")
            a(f"v_mul_u32_u24 {vt[2]}, 10, {vt[2]}")
            a(f"v_add_u32 {vt[2]}, {vt[2]}, {vt[1]}")
            a(f"s_lshl_b32 {st[0]}, {g.s_j}, 1")
            a(f"s_add_u32 {st[0]}, {st[0]}, {s_hw}")
            a(f"s_mul_i32 {st[0]}, {st[0]}, 800")
            a(f"v_lshl_add_u32 {vt[2]}, {vt[2]}, 1, {st[0]}")
            a(f"v_cmp_gt_u32 vcc, 10, {vt[1]}")
            a(f"v_mov_b32 {vt[7]}, {OOB:#x}")
            a(f"v_cndmask_b32 {v_pb[1]}, {vt[7]}, {vt[2]}, vcc")
            a(f"v_lshrrev_b32 {vt[3]}, 5, {vl}")
            a(f"v_mul_u32_u24 {vt[3]}, 160, {vt[3]}")
            a(f"v_add_u32 {vt[2]}, {vt[2]}, {vt[3]}")
            a(f"v_cndmask_b32 {v_pb[0]}, {vt[7]}, {vt[2]}, vcc")
            for jj in range(8):
                d = jj + (4 if jj >= 4 else 0)
                op = "buffer_load_ushort" if jj % 2 == 0 else "buffer_load_short_d16_hi"
                a(f"{op} {ptmp[jj]}, {v_pb[0]}, {g.r_wphi}, 0 offen offset:{40*d}")
            for jj in range(4):
                op = "buffer_load_ushort" if jj % 2 == 0 else "buffer_load_short_d16_hi"
                a(f"{op} {ptmp[8+jj]}, {v_pb[1]}, {g.r_wphi}, 0 offen offset:{40*(16+jj)}")
            g.vm.add("phi", 12)
        if t in (30, 31, 32, 33, 34) and g.stop_after not in ("p1", "p2"):
            lists = {30: (g.r_wg, 3072, 20, 12, 1536, 0x15555556), 31: (g.r_wu, 3072, 20, 12, 1536, 0x15555556),
                     32: (g.r_wo, 1280, 20, 5, 640, 0x33333334)}
            if t in lists:
                touch_wave(g, *lists[t])
    assert not pend
    g.stamp("p1_loop")
    V.release(mark_loop)
    g.waitvm("phi")
    for q in range(4): a(f"v_or_b32 {phi0[q]}, {ptmp[2*q]}, {ptmp[2*q+1]}")
    a(f"v_or_b32 {ptmp[8]}, {ptmp[8]}, {ptmp[9]}")
    a(f"v_or_b32 {ptmp[9]}, {ptmp[10]}, {ptmp[11]}")
    a(f"v_cmp_gt_u32 vcc, 32, {vl}")
    for q in range(2):
        a(f"v_cndmask_b32 {phi1q[q]}, 0, {ptmp[8+q]}, vcc")
        a(f"v_cndmask_b32 {phi1k[q]}, {ptmp[8+q]}, 0, vcc") if False else None
    a(f"v_cmp_le_u32 vcc, 32, {vl}")
    for q in range(2):
        a(f"v_cndmask_b32 {phi1k[q]}, 0, {ptmp[8+q]}, vcc")
    for q in range(2, 4):
        a(f"v_mov_b32 {phi1q[q]}, 0"); a(f"v_mov_b32 {phi1k[q]}, 0")
    for k in (8, 4, 2, 1):
        for i in range(k):
            a(f"v_pk_add_f32 {csl.sub(2*i,2)}, {csl.sub(2*i,2)}, {csl.sub(2*(i+k),2)}")
    a(f"s_lshl_b32 {st[0]}, {g.s_w}, 9")
    a(f"s_add_u32 {st[0]}, {st[0]}, {CS_OFF}")
    a(f"v_lshl_add_u32 {vt[0]}, {vl}, 3, {st[0]}")
    a(f"ds_write_b64 {vt[0]}, {csl.sub(0,2)}")
    a(f"s_mul_i32 {st[1]}, {s_hw}, 80")
    a(f"s_add_u32 {st[0]}, {st[0]}, {st[1]}")
    a(f"v_lshrrev_b32 {vt[1]}, 5, {vl}")
    a(f"v_lshl_add_u32 {vt[2]}, {vt[1]}, 4, {st[0]}")
    a(f"v_mul_u32_u24 {vt[3]}, 160, {vt[1]}")
    a(f"v_add_u32 {vt[3]}, {st[0]}, {vt[3]}")
    a(f"v_mov_b32 {vt[4]}, {st[0]}")
    cs = csl
    a("s_waitcnt lgkmcnt(0)")
    a(f"v_lshl_add_u32 {vt[5]}, {vt[1]}, 5, {st[0]}")
    csrd = [(0, 0, vt[2], 0), (0, 1, vt[2], 32), (0, 2, vt[3], 64), (0, 3, vt[4], 21*16),
            (1, 0, vt[2], 10*16), (1, 1, vt[2], 12*16), (1, 2, vt[5], 20*16), (1, 3, vt[2], 23*16)]
    for nb, rq, ad, off in csrd:
        a(f"ds_read_b128 {cs.sub(16*nb+4*rq,4)}, {ad} offset:{off}")
    nm = [V(2, 2), V(2, 2)]; sa = [V(2, 2), V(2, 2)]; rs2 = [V(2, 2), V(2, 2)]
    for sb in range(2):
        a(f"v_sub_f32 {nm[sb][0]}, 0, {stt[sb][0]}")
        a(f"v_mul_f32 {sa[sb][0]}, {f32hex(LOG2E)}, {stt[sb][1]}")
        a(f"v_sub_f32 {sa[sb][1]}, 0, {sa[sb][0]}")
        a(f"v_mov_b32 {rs2[sb][0]}, {stt[sb][1]}")
    a("s_barrier")
    a("s_waitcnt lgkmcnt(0)")
    PK = blk.sub(0, 32)
    def P(nb, sb): return PK.sub(8*(2*nb+sb), 8)
    for sb in range(2):
        for nb in range(2):
            for p in range(8):
                a(f"v_pk_fma_f32 {ACC(nb,sb).sub(2*p,2)}, {cs.sub(16*nb+2*p,2)}, {nm[sb]}, {ACC(nb,sb).sub(2*p,2)} op_sel_hi:[1,0,1]")
        for nb, p in ((1,4),(1,5),(1,6),(1,7),(0,6),(0,7)):
            a(f"v_pk_mul_f32 {ACC(nb,sb).sub(2*p,2)}, {ACC(nb,sb).sub(2*p,2)}, {rs2[sb]} op_sel_hi:[1,0]")
        for nb in range(2):
            for p in range(8):
                a(f"v_cvt_pk_bf16_f32 {P(nb,sb)[p]}, {ACC(nb,sb)[2*p]}, {ACC(nb,sb)[2*p+1]}")
    PKk = [ACC(0,0), ACC(0,1)]; PKq = [ACC(1,0), ACC(1,1)]
    for sb in range(2):
        a(f"v_mfma_f32_32x32x16_bf16 {PKk[sb]}, {phi0}, {P(1,sb).sub(0,4)}, 0")
        a(f"v_mfma_f32_32x32x16_bf16 {PKk[sb]}, {phi1k}, {P(0,sb).sub(4,4)}, {PKk[sb]}")
    for sb in range(2):
        a(f"v_mfma_f32_32x32x16_bf16 {PKq[sb]}, {phi0}, {P(0,sb).sub(0,4)}, 0")
        a(f"v_mfma_f32_32x32x16_bf16 {PKq[sb]}, {phi1q}, {P(0,sb).sub(4,4)}, {PKq[sb]}")
    v_wa = V(4)
    a(f"v_and_b32 {vt[0]}, 31, {vl}")
    a(f"s_lshl_b32 {st[0]}, {s_wsr}, 6")
    a(f"v_add_u32 {vt[1]}, {st[0]}, {vt[0]}")
    a(f"v_lshlrev_b32 {vt[1]}, 6, {vt[1]}")
    a(f"s_lshl_b32 {st[1]}, {s_hw}, 13")
    a(f"v_add_u32 {vt[1]}, {st[1]}, {vt[1]}")
    a(f"v_bfe_u32 {vt[2]}, {vl}, 1, 2")
    a(f"v_lshrrev_b32 {vt[3]}, 5, {vl}")
    def waddr(dst, unit_expr_const=None, unit_reg=None, sub_reg=None, sub_const=0):
        if unit_reg is None:
            a(f"v_xor_b32 {vt[5]}, {unit_expr_const}, {vt[2]}")
        else:
            a(f"v_xor_b32 {vt[5]}, {unit_reg}, {vt[2]}")
        a(f"v_lshl_add_u32 {dst}, {vt[5]}, 4, {vt[1]}")
        if sub_reg is not None:
            a(f"v_lshl_add_u32 {dst}, {sub_reg}, 3, {dst}")
        elif sub_const:
            a(f"v_add_u32 {dst}, {8*sub_const}, {dst}")
    v_va = V(3)
    a(f"v_xor_b32 {vt[4]}, 1, {vt[3]}")
    waddr(v_va[0], unit_reg=vt[3])
    a(f"v_add_u32 {vt[6]}, 1, {vt[3]}")
    waddr(v_va[1], unit_reg=vt[6], sub_reg=vt[4])
    a(f"v_lshlrev_b32 {vt[6]}, 1, {vt[3]}")
    waddr(v_va[2], unit_reg=vt[6], sub_const=1)
    for i in range(3): a(f"v_add_u32 {v_va[i]}, {VT_OFF}, {v_va[i]}")
    for sb in range(2):
        a(f"ds_write_b64 {v_va[0]}, {P(1,sb).sub(4,2)} offset:{sb*2048}")
        a(f"ds_write_b64 {v_va[1]}, {P(1,sb).sub(6,2)} offset:{sb*2048}")
        a(f"ds_write_b64 {v_va[2]}, {P(0,sb).sub(6,2)} offset:{sb*2048}")
    ones4 = V(4, 2)
    a(f"v_mov_b32 {ones4[0]}, 0x3f80"); a(f"v_mov_b32 {ones4[1]}, 0")
    a(f"v_mov_b32 {ones4[2]}, 0x3f80"); a(f"v_mov_b32 {ones4[3]}, 0")
    a(f"v_add_u32 {vt[6]}, {st[0]}, {vl}")
    a(f"v_lshlrev_b32 {vt[6]}, 6, {vt[6]}")
    a(f"v_add_u32 {vt[6]}, {st[1]}, {vt[6]}")
    a(f"v_xor_b32 {vt[5]}, 3, {vt[2]}")
    a(f"v_lshl_add_u32 {vt[6]}, {vt[5]}, 4, {vt[6]}")
    a(f"v_add_u32 {vt[6]}, {VT_OFF}, {vt[6]}")
    a(f"ds_write_b128 {vt[6]}, {ones4}")
    v_ta = V(4)
    for t in range(4):
        waddr(v_ta[t], unit_expr_const=t, sub_reg=vt[3])
        a(f"v_add_u32 {v_ta[t]}, {T0_OFF}, {v_ta[t]}")
    tmp = blk.sub(32, 32)
    def softmax(pin, sb, out):
        M, N, T2 = tmp[0], tmp[1], tmp[2]
        ep = tmp.sub(4, 10); en = tmp.sub(14, 10); cc = tmp.sub(24, 4)
        a(f"v_max3_f32 {M}, {pin[0]}, {pin[1]}, {pin[2]}")
        a(f"v_max3_f32 {N}, -{pin[0]}, -{pin[1]}, -{pin[2]}")
        for i in (3, 5, 7):
            a(f"v_max3_f32 {M}, {M}, {pin[i]}, {pin[i+1]}")
            a(f"v_max3_f32 {N}, {N}, -{pin[i]}, -{pin[i+1]}")
        a(f"v_max_f32 {M}, {M}, {pin[9]}")
        a(f"v_max_f32_e64 {N}, {N}, -{pin[9]}")
        a(f"v_permlane32_swap_b32 {M}, {N}")
        a(f"v_max_f32 {M}, {M}, {N}")
        a(f"v_mov_b32 {N}, {M}")
        a(f"v_permlane32_swap_b32 {M}, {N}")
        a(f"v_mul_f32 {cc[0]}, {sa[sb][1]}, {M}")
        a(f"v_mul_f32 {cc[2]}, {sa[sb][1]}, {N}")
        for p in range(5):
            a(f"v_pk_fma_f32 {ep.sub(2*p,2)}, {pin.sub(2*p,2)}, {sa[sb]}, {cc.sub(0,2)} op_sel_hi:[1,0,0]")
            a(f"v_pk_fma_f32 {en.sub(2*p,2)}, {pin.sub(2*p,2)}, {sa[sb]}, {cc.sub(2,2)} op_sel:[0,1,0] op_sel_hi:[1,1,0]")
        for e in range(10):
            a(f"v_exp_f32 {ep[e]}, {ep[e]}")
            a(f"v_exp_f32 {en[e]}, {en[e]}")
        sp, sn = cc.sub(0, 2), cc.sub(2, 2)
        a(f"v_pk_add_f32 {sp}, {ep.sub(0,2)}, {ep.sub(2,2)}")
        a(f"v_pk_add_f32 {sn}, {en.sub(0,2)}, {en.sub(2,2)}")
        for p in range(2, 5):
            a(f"v_pk_add_f32 {sp}, {sp}, {ep.sub(2*p,2)}")
            a(f"v_pk_add_f32 {sn}, {sn}, {en.sub(2*p,2)}")
        a(f"v_add_f32 {M}, {sp[0]}, {sp[1]}")
        a(f"v_add_f32 {N}, {sn[0]}, {sn[1]}")
        a(f"v_permlane32_swap_b32 {M}, {N}")
        a(f"v_add_f32 {M}, {M}, {N}")
        a(f"v_mov_b32 {N}, {M}")
        a(f"v_permlane32_swap_b32 {M}, {N}")
        a(f"v_rcp_f32 {cc[0]}, {M}")
        a(f"v_rcp_f32 {cc[2]}, {N}")
        for p in range(5):
            a(f"v_pk_mul_f32 {ep.sub(2*p,2)}, {ep.sub(2*p,2)}, {cc.sub(0,2)} op_sel_hi:[1,0]")
            a(f"v_pk_mul_f32 {en.sub(2*p,2)}, {en.sub(2*p,2)}, {cc.sub(2,2)} op_sel_hi:[1,0]")
        for p in range(5):
            a(f"v_cvt_pk_bf16_f32 {out[p]}, {ep[2*p]}, {ep[2*p+1]}")
            a(f"v_cvt_pk_bf16_f32 {out[5+p]}, {en[2*p]}, {en[2*p+1]}")
    phik = V(10, 2)
    for sb in range(2):
        softmax(PKk[sb], sb, phik)
        for t in range(4):
            a(f"ds_write_b64 {v_ta[t]}, {phik.sub(2*t,2)} offset:{sb*2048}")
        a(f"ds_write_b64 {v_ta[0]}, {phik.sub(8,2)} offset:{T1_OFF - T0_OFF + sb*2048}")
    g.stamp("p1_ksm")
    a("s_waitcnt lgkmcnt(0)")
    a("s_barrier")
    v_ka = V(2); v_kb = V(2)
    a(f"v_lshrrev_b32 {vt[0]}, 5, {vl}")
    a(f"v_bfe_u32 {vt[1]}, {vl}, 2, 2")
    a(f"v_lshl_add_u32 {vt[0]}, {vt[0]}, 3, {vt[1]}")
    a(f"v_lshlrev_b32 {vt[0]}, 6, {vt[0]}")
    a(f"v_bfe_u32 {vt[2]}, {vl}, 4, 1")
    a(f"v_bfe_u32 {vt[3]}, {vl}, 1, 1")
    a(f"v_lshl_add_u32 {vt[2]}, {vt[2]}, 1, {vt[3]}")
    a(f"v_lshrrev_b32 {vt[1]}, 1, {vt[1]}")
    a(f"v_xor_b32 {vt[2]}, {vt[2]}, {vt[1]}")
    a(f"v_and_b32 {vt[3]}, 1, {vl}")
    a(f"v_lshlrev_b32 {vt[3]}, 3, {vt[3]}")
    a(f"v_add_u32 {vt[0]}, {vt[0]}, {vt[3]}")
    a(f"s_lshl_b32 {st[1]}, {s_hw}, 13")
    a(f"s_mul_i32 {st[2]}, {s_wsr}, {T1_OFF - T0_OFF}")
    a(f"s_add_u32 {st[2]}, {st[2]}, {st[1]}")
    a(f"s_add_u32 {st[2]}, {st[2]}, {T0_OFF}")
    a(f"s_add_u32 {st[1]}, {st[1]}, {VT_OFF}")
    for th in range(2):
        a(f"v_xor_b32 {vt[4]}, {2*th}, {vt[2]}")
        a(f"v_lshl_add_u32 {vt[4]}, {vt[4]}, 4, {vt[0]}")
        a(f"v_add_u32 {v_ka[th]}, {st[2]}, {vt[4]}")
        a(f"v_add_u32 {v_kb[th]}, {st[1]}, {vt[4]}")
    kf = blk
    for u in range(8):
        for th in range(2):
            a(f"ds_read_b64_tr_b16 {kf.sub(8*u+2*th,2)}, {v_ka[th]} offset:{(16*u+4*th)*64}")
            a(f"ds_read_b64_tr_b16 {kf.sub(8*u+4+2*th,2)}, {v_kb[th]} offset:{(16*u+4*th)*64}")
    KVD = PKk[0]
    for u in range(8):
        g.wait(None, min(15, 4*(7-u)))
        c = "0" if u == 0 else str(KVD)
        a(f"v_mfma_f32_32x32x16_bf16 {KVD}, {kf.sub(8*u,4)}, {kf.sub(8*u+4,4)}, {c}")
    kvp = PKk[1].sub(0, 8)
    a(f"s_lshl_b32 {st[0]}, {g.s_j}, 4")
    a(f"s_add_u32 {st[0]}, {st[0]}, {g.s_rb}")
    a(f"s_lshl_b32 {st[0]}, {st[0]}, 1")
    a(f"s_add_u32 {st[0]}, {st[0]}, {s_hw}")
    a(f"s_mul_i32 {st[0]}, {st[0]}, 2560")
    a(f"s_add_u32 {st[0]}, {st[0]}, {KVP_OFF}")
    for p in range(8):
        a(f"v_cvt_pk_bf16_f32 {kvp[p]}, {KVD[2*p]}, {KVD[2*p+1]}")
    lb = a.newlabel("kvb"); le = a.newlabel("kve")
    a(f"s_cmp_eq_u32 {s_wsr}, 0")
    a(f"s_cbranch_scc0 {lb}")
    a(f"v_lshl_add_u32 {vt[0]}, {vl}, 4, {st[0]}")
    a(f"buffer_store_dwordx4 {kvp.sub(0,4)}, {vt[0]}, {g.r_ws}, 0 offen sc1")
    a(f"buffer_store_dwordx4 {kvp.sub(4,4)}, {vt[0]}, {g.r_ws}, 0 offen offset:1024 sc1")
    a(f"s_branch {le}")
    a.label(lb)
    a(f"v_lshl_add_u32 {vt[0]}, {vl}, 3, {st[0]}")
    a(f"buffer_store_dwordx2 {kvp.sub(0,2)}, {vt[0]}, {g.r_ws}, 0 offen offset:2048 sc1")
    a.label(le)
    g.drain()
    a("s_barrier")
    g.signal(S1, g.s_j)
    g.stamp("p1_sig")
    def qsm():
        for sb in range(2):
            softmax(PKq[sb], sb, g.phiq[sb].sub(0, 10))
            g.a(f"v_mov_b32 {g.phiq[sb][10]}, 0")
            g.a(f"v_mov_b32 {g.phiq[sb][11]}, 0")
    if g.stop_after in ("p1", "p2"):
        qsm()
    else:
        wrow_setup(g, swap23=True)
        a_save = a
        def qsm2():
            nonlocal a
            a = g.a
            qsm()
            a = a_save
        main = capture(g, qsm2)
        extra = []
        for pp in range(5):
            extra += wrow_dma(g, g.r_wo, period=pp)
        interleave(g, main, extra, 7, start=4)
        g.vm.add("wo", 30)
    if g.stop_after not in ("p1", "p2"):
        lskip = a.newlabel("gus"); lu = a.newlabel("guu"); lc = a.newlabel("guc")
        a(f"s_cmp_lt_u32 {g.s_w}, 2")
        a(f"s_cbranch_scc1 {lskip}")
        gsd = blk.sub(0, 40); gcs = blk.sub(40, 8); gct = blk.sub(48, 8); gout = blk[56]
        colsum_addr(g, gout, "gu")
        a(f"s_cmp_eq_u32 {g.s_w}, 2")
        a(f"s_cbranch_scc0 {lu}")
        for i in range(10):
            a(f"s_mov_b32 {g.s_so}, {i*4*3072}")
            a(f"buffer_load_dwordx4 {gsd.sub(4*i,4)}, {vt[0]}, {g.r_wg}, {g.s_so} offen")
        a(f"s_branch {lc}")
        a.label(lu)
        for i in range(10):
            a(f"s_mov_b32 {g.s_so}, {i*4*3072}")
            a(f"buffer_load_dwordx4 {gsd.sub(4*i,4)}, {vt[0]}, {g.r_wu}, {g.s_so} offen")
        a.label(lc)
        a("s_waitcnt vmcnt(0)")
        colsum_compute(g, gsd, gcs, gct, gout)
        a("s_waitcnt vmcnt(0)")
        a.label(lskip)
    g.stamp("p1_qsm")
    if g.dump == "p1":
        g.dump_regs([g.phiq[sb][i] for sb in range(2) for i in range(10)])
    V.release(mark)

def p2(g):
    a, S, V, A = g.a, g.S, g.V, g.A
    st, vt, vl = g.s_t, g.v_t, g.v_l
    s_hw, s_wsr = g.s_hw, g.s_wsr
    mark = V.mark()
    g.poll(S1, g.s_j)
    if g.stop_after not in ("p1", "p2"):
        g.signal(S4B, g.s_j)
    g.stamp("s1_done")
    gat = V(80, 4)
    va = V(2)
    a(f"s_lshl_b32 {st[0]}, {g.s_j}, 4")
    a(f"s_lshl_b32 {st[1]}, {s_wsr}, 3")
    a(f"s_add_u32 {st[0]}, {st[0]}, {st[1]}")
    a(f"s_lshl_b32 {st[0]}, {st[0]}, 1")
    a(f"s_add_u32 {st[0]}, {st[0]}, {s_hw}")
    a(f"s_mul_i32 {st[0]}, {st[0]}, 2560")
    a(f"s_add_u32 {st[0]}, {st[0]}, {KVP_OFF}")
    a(f"v_lshl_add_u32 {va[0]}, {vl}, 4, {st[0]}")
    a(f"v_lshl_add_u32 {va[1]}, {vl}, 3, {st[0]}")
    for i in range(8):
        a(f"s_mov_b32 {g.s_so}, {i*5120}")
        a(f"buffer_load_dwordx4 {gat.sub(10*i,4)}, {va[0]}, {g.r_ws}, {g.s_so} offen sc1")
        a(f"buffer_load_dwordx4 {gat.sub(10*i+4,4)}, {va[0]}, {g.r_ws}, {g.s_so} offen offset:1024 sc1")
        a(f"buffer_load_dwordx2 {gat.sub(10*i+8,2)}, {va[1]}, {g.r_ws}, {g.s_so} offen offset:2048 sc1")
        g.vm.add(("g", i), 3)
    ks = V(20, 4)
    for e in range(20): a(f"v_mov_b32 {ks[e]}, 0")
    for i in range(8):
        g.waitvm(("g", i))
        for w in range(10):
            a(f"v_dot2c_f32_bf16 {ks[2*w]}, {g.s_sel_lo}, {gat[10*i+w]}")
            a(f"v_dot2c_f32_bf16 {ks[2*w+1]}, {g.s_sel_hi}, {gat[10*i+w]}")
    a(f"s_mul_i32 {st[0]}, {g.s_w}, 5120")
    a(f"s_add_u32 {st[0]}, {st[0]}, {KVX_OFF}")
    a(f"v_lshl_add_u32 {vt[0]}, {vl}, 4, {st[0]}")
    a(f"s_xor_b32 {st[1]}, {g.s_w}, 2")
    a(f"s_mul_i32 {st[1]}, {st[1]}, 5120")
    a(f"s_add_u32 {st[1]}, {st[1]}, {KVX_OFF}")
    a(f"v_lshl_add_u32 {vt[1]}, {vl}, 4, {st[1]}")
    for q in range(5):
        a(f"ds_write_b128 {vt[0]}, {ks.sub(4*q,4)} offset:{1024*q}")
    a("s_waitcnt lgkmcnt(0)")
    a("s_barrier")
    ko = gat.sub(0, 20)
    for q in range(5):
        a(f"ds_read_b128 {ko.sub(4*q,4)}, {vt[1]} offset:{1024*q}")
    a("s_waitcnt lgkmcnt(0)")
    for p in range(10):
        a(f"v_pk_add_f32 {ks.sub(2*p,2)}, {ks.sub(2*p,2)}, {ko.sub(2*p,2)}")
    kvf = V(12, 2)
    for p in range(10):
        a(f"v_cvt_pk_bf16_f32 {kvf[p]}, {ks[2*p]}, {ks[2*p+1]}")
    a(f"v_mov_b32 {kvf[10]}, 0"); a(f"v_mov_b32 {kvf[11]}, 0")
    num = [gat.sub(32, 16), gat.sub(48, 16)]
    for sb in range(2):
        for u in range(3):
            c = "0" if u == 0 else str(num[sb])
            a(f"v_mfma_f32_32x32x16_bf16 {num[sb]}, {kvf.sub(4*u,4)}, {g.phiq[sb].sub(4*u,4)}, {c}")
    v_oa = V(2)
    a(f"v_and_b32 {vt[0]}, 31, {vl}")
    a(f"s_lshl_b32 {st[0]}, {s_wsr}, 6")
    a(f"v_add_u32 {vt[0]}, {st[0]}, {vt[0]}")
    a(f"v_mul_u32_u24 {vt[0]}, 80, {vt[0]}")
    a(f"s_mul_i32 {st[0]}, {s_hw}, 40")
    a(f"s_add_u32 {st[0]}, {st[0]}, {OT_OFF}")
    a(f"v_add_u32 {vt[0]}, {st[0]}, {vt[0]}")
    a(f"v_lshrrev_b32 {vt[1]}, 5, {vl}")
    a(f"v_lshl_add_u32 {v_oa[0]}, {vt[1]}, 3, {vt[0]}")
    a(f"v_lshlrev_b32 {vt[2]}, 3, {vl}")
    a(f"v_add_u32 {vt[2]}, {OTJ_OFF - 32}, {vt[2]}")
    a(f"v_cmp_gt_u32 vcc, 32, {vl}")
    a(f"v_cndmask_b32 {v_oa[1]}, {vt[2]}, {vt[0]}, vcc")
    op = V(6, 2)
    for sb in range(2):
        n = num[sb]
        a(f"v_add_f32 {vt[4]}, {f32hex(1e-6)}, {n[12]}")
        a(f"v_rcp_f32 {vt[4]}, {vt[4]}")
        for p in range(6):
            a(f"v_pk_mul_f32 {n.sub(2*p,2)}, {n.sub(2*p,2)}, {vt.sub(4,2)} op_sel_hi:[1,0]")
        for p in range(6):
            a(f"v_cvt_pk_bf16_f32 {op[p]}, {n[2*p]}, {n[2*p+1]}")
        a(f"ds_write_b64 {v_oa[0]}, {op.sub(0,2)} offset:{sb*32*80}")
        a(f"ds_write_b64 {v_oa[0]}, {op.sub(2,2)} offset:{sb*32*80 + 16}")
        if sb == 0:
            a(f"ds_write_b64 {v_oa[1]}, {op.sub(4,2)} offset:32")
        else:
            a(f"v_add_u32 {vt[5]}, {32*80}, {v_oa[1]}")
            a(f"v_cndmask_b32 {vt[5]}, {v_oa[1]}, {vt[5]}, vcc")
            a(f"ds_write_b64 {vt[5]}, {op.sub(4,2)} offset:32")
    a("s_waitcnt lgkmcnt(0)")
    a("s_barrier")
    od = V(12, 4); v_ra = V(3); v_ga = V(3)
    for ii in range(3):
        a(f"s_add_u32 {st[0]}, {g.s_w}, {4*ii}")
        a(f"s_lshr_b32 {st[1]}, {st[0]}, 1")
        a(f"s_and_b32 {st[2]}, {st[0]}, 1")
        a(f"s_lshl_b32 {st[2]}, {st[2]}, 6")
        a(f"v_add_u32 {vt[0]}, {st[2]}, {vl}")
        a(f"v_mul_u32_u24 {vt[1]}, 80, {vt[0]}")
        a(f"s_lshl_b32 {st[3]}, {st[1]}, 4")
        a(f"s_add_u32 {st[3]}, {st[3]}, {OT_OFF}")
        a(f"v_add_u32 {v_ra[ii]}, {st[3]}, {vt[1]}")
        a(f"s_mul_i32 {st[3]}, {g.s_j}, 5")
        a(f"s_add_u32 {st[3]}, {st[3]}, {st[1]}")
        a(f"s_lshr_b32 {st[4]}, {st[3]}, 2")
        a(f"s_lshl_b32 {st[4]}, {st[4]}, 10")
        a(f"s_and_b32 {st[3]}, {st[3]}, 3")
        a(f"s_lshl_b32 {st[3]}, {st[3]}, 8")
        a(f"s_add_u32 {st[3]}, {st[3]}, {st[4]}")
        a(f"s_mul_i32 {st[4]}, {g.s_rb}, {8*20480}")
        a(f"s_add_u32 {st[3]}, {st[3]}, {st[4]}")
        a(f"s_add_u32 {st[3]}, {st[3]}, {O_OFF}")
        a(f"s_cmp_lt_u32 {st[0]}, 10")
        a(f"s_cselect_b32 {st[3]}, {st[3]}, {OOB:#x}")
        a(f"v_lshrrev_b32 {vt[1]}, 4, {vt[0]}")
        a(f"v_mul_u32_u24 {vt[1]}, 20480, {vt[1]}")
        a(f"v_and_b32 {vt[2]}, 15, {vt[0]}")
        a(f"v_lshl_add_u32 {vt[1]}, {vt[2]}, 4, {vt[1]}")
        a(f"v_add_u32 {v_ga[ii]}, {st[3]}, {vt[1]}")
        a(f"ds_read_b128 {od.sub(4*ii,4)}, {v_ra[ii]}")
    for ii in range(3):
        g.wait(None, 2-ii)
        a(f"buffer_store_dwordx4 {od.sub(4*ii,4)}, {v_ga[ii]}, {g.r_ws}, 0 offen sc1")
    g.drain()
    a("s_barrier")
    g.signal(S2, g.s_rb)
    g.stamp("p2_sig")
    V.release(mark)

WROW = 192
WPER = 32*WROW
def wrow_setup(g, swap23):
    a, V = g.a, g.V
    st, vt, vl = g.s_t, g.v_t, g.v_l
    a(f"s_mov_b32 {st[0]}, 0x55555556")
    a(f"s_mul_i32 {st[1]}, {g.s_ct}, 160")
    a(f"s_and_b32 {st[1]}, {st[1]}, 0xffffffc0")
    a(f"v_lshrrev_b32 {vt[5]}, 2, {vl}")
    a(f"v_and_b32 {vt[6]}, 3, {vl}")
    for m in range(6):
        a(f"v_add_u32 {vt[0]}, {16*m}, {vt[5]}")
        a(f"v_mul_hi_u32 {vt[1]}, {vt[0]}, {st[0]}")
        a(f"v_mul_u32_u24 {vt[2]}, 3, {vt[1]}")
        a(f"v_sub_u32 {vt[2]}, {vt[0]}, {vt[2]}")
        a(f"v_bfe_u32 {vt[4]}, {vt[1]}, 2, 1")
        a(f"v_lshlrev_b32 {vt[7]}, 1, {vt[4]}")
        a(f"v_xor_b32 {vt[7]}, {vt[7]}, {vt[6]}")
        if swap23:
            a(f"v_and_b32 {vt[3]}, 0x13, {vt[1]}")
            a(f"v_lshl_or_b32 {vt[3]}, {vt[4]}, 3, {vt[3]}")
            a(f"v_bfe_u32 {vt[4]}, {vt[1]}, 3, 1")
            a(f"v_lshl_or_b32 {vt[1]}, {vt[4]}, 2, {vt[3]}")
        a(f"v_mul_u32_u24 {vt[1]}, 1280, {vt[1]}")
        a(f"v_lshl_add_u32 {vt[1]}, {vt[2]}, 6, {vt[1]}")
        a(f"v_lshl_add_u32 {vt[1]}, {vt[7]}, 4, {vt[1]}")
        a(f"v_add_u32 {g.v_wr[m]}, {st[1]}, {vt[1]}")
        if m % 4: a(f"v_subrev_u32 {g.v_wr[m]}, {1024*(m%4)}, {g.v_wr[m]}")

def wrow_dma(g, srd, period=None, so_line=None, m0_line0=None, m0_line4=None):
    out = []
    if period is not None:
        if period == 0:
            first = [f"s_mul_i32 {g.s_wso}, {g.s_w}, {5*32*1280}", f"s_mul_i32 {g.s_wm0}, {g.s_w}, {5*WPER}"]
        else:
            first = [f"s_add_u32 {g.s_wso}, {g.s_wso}, {32*1280}", f"s_add_u32 {g.s_wm0}, {g.s_wm0}, {WPER}"]
        m0a = [f"s_mov_b32 m0, {g.s_wm0}"]; m0b = [f"s_add_u32 m0, {g.s_wm0}, 4096"]
    else:
        first = so_line; m0a = m0_line0; m0b = m0_line4
    for m in range(6):
        grp = []
        if m == 0: grp += first + m0a
        if m == 4: grp += m0b
        off = f" offset:{1024*(m%4)}" if m % 4 else ""
        grp.append(f"buffer_load_dwordx4 {g.v_wr[m]}, {srd}, {g.s_wso} offen{off} lds")
        out.append(grp)
    return out

def trw_base(g, dst2, extra_s=None):
    a, st, vt, vl = g.a, g.s_t, g.v_t, g.v_l
    a(f"v_lshrrev_b32 {vt[0]}, 5, {vl}")
    a(f"v_lshlrev_b32 {vt[0]}, 4, {vt[0]}")
    a(f"v_bfe_u32 {vt[2]}, {vl}, 4, 1")
    a(f"v_lshl_add_u32 {vt[0]}, {vt[2]}, 2, {vt[0]}")
    a(f"v_bfe_u32 {vt[1]}, {vl}, 2, 2")
    a(f"v_add_u32 {vt[0]}, {vt[0]}, {vt[1]}")
    a(f"v_mul_u32_u24 {vt[0]}, {WROW}, {vt[0]}")
    a(f"v_and_b32 {vt[1]}, 3, {vl}")
    a(f"v_lshl_add_u32 {vt[0]}, {vt[1]}, 3, {vt[0]}")
    a(f"s_and_b32 {st[5]}, {g.s_ct}, 1")
    a(f"s_lshl_b32 {st[6]}, {st[5]}, 5")
    if extra_s is not None: a(f"s_add_u32 {st[6]}, {st[6]}, {extra_s}")
    a(f"v_add_u32 {vt[0]}, {st[6]}, {vt[0]}")
    a(f"v_lshlrev_b32 {vt[2]}, 5, {vt[2]}")
    a(f"v_add_u32 {vt[3]}, {vt[0]}, {vt[2]}")
    a(f"v_sub_u32 {vt[4]}, {vt[0]}, {vt[2]}")
    a(f"s_cmp_eq_u32 {st[5]}, 0")
    a(f"s_cselect_b64 vcc, -1, 0")
    a(f"v_cndmask_b32 {dst2[0]}, {vt[4]}, {vt[3]}, vcc")
    a(f"v_cndmask_b32 {dst2[1]}, {vt[3]}, {vt[4]}, vcc")

def pair_store(g, src10, tmp4, addr3, srd, flags):
    a = g.a
    for i, (na, nb) in enumerate(((0, 1), (2, 3), (4, 4))):
        t = tmp4[i]
        a(f"v_mov_b32 {t[0]}, {src10[2*na]}")
        a(f"v_mov_b32 {t[1]}, {src10[2*na+1]}")
        a(f"v_mov_b32 {t[2]}, {src10[2*nb]}")
        a(f"v_mov_b32 {t[3]}, {src10[2*nb+1]}")
    for i in range(3):
        t = tmp4[i]
        a(f"v_permlane16_swap_b32 {t[0]}, {t[2]}")
        a(f"v_permlane16_swap_b32 {t[1]}, {t[3]}")
    for i in range(3):
        a(f"buffer_store_dwordx4 {tmp4[i]}, {addr3[i]}, {srd}, 0 offen{flags}")

def p3(g):
    a, S, V, A = g.a, g.S, g.V, g.A
    st, vt, vl = g.s_t, g.v_t, g.v_l
    g.hp = V(10, 2)
    mark = V.mark(); amark = A.mark()
    xr = V(10, 2)
    v_row = V()
    a(f"s_lshl_b32 {st[0]}, {g.s_rb64}, 2")
    a(f"s_add_u32 {st[0]}, {st[0]}, {g.s_w}")
    a(f"s_lshl_b32 {st[1]}, {st[0]}, 4")
    a(f"v_and_b32 {vt[0]}, 15, {vl}")
    a(f"v_add_u32 {v_row}, {st[1]}, {vt[0]}")
    a(f"v_mul_u32_u24 {vt[1]}, 1280, {v_row}")
    a(f"v_lshrrev_b32 {vt[2]}, 4, {vl}")
    a(f"v_lshl_add_u32 {vt[1]}, {vt[2]}, 3, {vt[1]}")
    a(f"s_mul_i32 {st[2]}, {g.s_ct}, 160")
    a(f"v_add_u32 {vt[1]}, {st[2]}, {vt[1]}")
    for nb in range(5):
        a(f"buffer_load_dwordx2 {xr.sub(2*nb,2)}, {vt[1]}, {g.r_x}, 0 offen offset:{32*nb}")
    g.vm.add("xres", 5)
    v_ab = [V(2), V(2)]
    trw_base(g, v_ab[0])
    for i in range(2): a(f"v_add_u32 {v_ab[1][i]}, {10*WPER}, {v_ab[0][i]}")
    v_of = V()
    a(f"s_mul_i32 {st[0]}, {st[0]}, 20480")
    a(f"s_add_u32 {st[0]}, {st[0]}, {O_OFF}")
    a(f"v_lshl_add_u32 {v_of}, {vl}, 4, {st[0]}")
    acc = V(20, 4); wf = [V(20, 2) for _ in range(3)]
    of = A(80, 4)
    for i in range(20): a(f"v_mov_b32 {acc[i]}, 0")
    g.drain()
    g.poll(S2, g.s_rb, also=(S4B, g.s_j))
    g.stamp("s2_done")
    for kb in range(20):
        if kb % 4 == 0: a(f"s_mov_b32 {g.s_so}, {1024*kb}")
        a(f"buffer_load_dwordx4 {of.sub(4*kb,4)}, {v_of}, {g.r_ws}, {g.s_so} offen offset:{1024*(kb%4)} sc1")
        g.vm.add(("o", kb))
    def reads(t):
        bases = v_ab[0] if t < 10 else v_ab[1]
        out = []
        for nb in range(5):
            for th in range(2):
                out.append(f"ds_read_b64_tr_b16 {wf[t%3].sub(4*nb+2*th,2)}, {bases[nb&1]} offset:{(32*(t%10)+8*th)*WROW + 32*nb}")
        return out
    for l in reads(0) + reads(1): a(l)
    for t in range(20):
        rd = reads(t+2) if t + 2 < 20 else []
        g.wait(g.vm.wait(("o", t)), 10 if t + 1 < 20 else 0)
        for nb in range(5):
            a(f"v_mfma_f32_16x16x32_bf16 {acc.sub(4*nb,4)}, {wf[t%3].sub(4*nb,4)}, {of.sub(4*t,4)}, {acc.sub(4*nb,4)}")
            for l in rd[2*nb:2*nb+2]: a(l)
    g.stamp("p3_loop")
    a("s_barrier")
    xf = wf[0]
    for i in range(10):
        a(f"v_lshlrev_b32 {xf[2*i]}, 16, {xr[i]}")
        a(f"v_and_b32 {xf[2*i+1]}, 0xffff0000, {xr[i]}")
    for i in range(10):
        a(f"v_pk_add_f32 {acc.sub(2*i,2)}, {acc.sub(2*i,2)}, {xf.sub(2*i,2)}")
    for i in range(10):
        a(f"v_cvt_pk_bf16_f32 {g.hp[i]}, {acc[2*i]}, {acc[2*i+1]}")
    tmp4 = [wf[1].sub(0,4), wf[1].sub(4,4), wf[1].sub(8,4)]
    ad = wf[2].sub(0, 3)
    a(f"s_lshl_b32 {st[0]}, {g.s_rb64}, 2")
    a(f"s_add_u32 {st[0]}, {st[0]}, {g.s_w}")
    a(f"s_lshr_b32 {st[1]}, {st[0]}, 1")
    a(f"s_mul_i32 {st[1]}, {st[1]}, 40")
    a(f"s_mul_i32 {st[2]}, {g.s_ct}, 5")
    a(f"s_add_u32 {st[1]}, {st[1]}, {st[2]}")
    a(f"s_lshl_b32 {st[1]}, {st[1]}, 10")
    a(f"s_and_b32 {st[2]}, {g.s_w}, 1")
    a(f"s_lshl_b32 {st[2]}, {st[2]}, 8")
    a(f"s_add_u32 {st[1]}, {st[1]}, {st[2]}")
    a(f"s_add_u32 {st[1]}, {st[1]}, {H_OFF}")
    a(f"v_bfe_u32 {vt[0]}, {vl}, 4, 1")
    a(f"v_lshlrev_b32 {vt[0]}, 10, {vt[0]}")
    a(f"v_lshrrev_b32 {vt[1]}, 5, {vl}")
    a(f"v_lshl_add_u32 {vt[0]}, {vt[1]}, 9, {vt[0]}")
    a(f"v_and_b32 {vt[1]}, 15, {vl}")
    a(f"v_lshl_add_u32 {vt[0]}, {vt[1]}, 4, {vt[0]}")
    a(f"v_add_u32 {ad[0]}, {st[1]}, {vt[0]}")
    a(f"v_add_u32 {ad[1]}, 2048, {ad[0]}")
    a(f"v_add_u32 {ad[2]}, 4096, {ad[0]}")
    a(f"v_bfe_u32 {vt[2]}, {vl}, 4, 1")
    a(f"v_cmp_eq_u32 vcc, 0, {vt[2]}")
    a(f"v_mov_b32 {vt[3]}, {OOB:#x}")
    a(f"v_cndmask_b32 {ad[2]}, {vt[3]}, {ad[2]}, vcc")
    pair_store(g, g.hp, tmp4, ad, g.r_ws, " sc1")
    sq = xf.sub(0, 4)
    s_ones = st[4]
    a(f"s_mov_b32 {s_ones}, {ONES2:#x}")
    for i in range(4): a(f"v_mov_b32 {sq[i]}, 0")
    for i in range(10):
        a(f"v_dot2c_f32_bf16 {sq[i%2]}, {s_ones}, {g.hp[i]}")
        a(f"v_dot2c_f32_bf16 {sq[2+i%2]}, {g.hp[i]}, {g.hp[i]}")
    a(f"v_add_f32 {sq[0]}, {sq[0]}, {sq[1]}")
    a(f"v_add_f32 {sq[2]}, {sq[2]}, {sq[3]}")
    a(f"v_permlane32_swap_b32 {sq[0]}, {sq[2]}")
    a(f"v_add_f32 {sq[0]}, {sq[0]}, {sq[2]}")
    a(f"v_mov_b32 {sq[1]}, {sq[0]}")
    a(f"v_permlane16_swap_b32 {sq[0]}, {sq[1]}")
    a(f"v_add_f32 {sq[0]}, {sq[0]}, {sq[1]}")
    a(f"v_lshlrev_b32 {vt[0]}, 6, {v_row}")
    a(f"s_lshl_b32 {st[0]}, {g.s_ct}, 3")
    a(f"s_add_u32 {st[0]}, {st[0]}, {HST_OFF}")
    a(f"v_add_u32 {vt[0]}, {st[0]}, {vt[0]}")
    a(f"v_lshrrev_b32 {vt[1]}, 5, {vl}")
    a(f"v_lshl_add_u32 {vt[0]}, {vt[1]}, 2, {vt[0]}")
    a(f"v_cndmask_b32 {vt[0]}, {vt[3]}, {vt[0]}, vcc")
    a(f"buffer_store_dword {sq[0]}, {vt[0]}, {g.r_ws}, 0 offen sc1")
    g.drain()
    a("s_barrier")
    g.signal(S3, g.s_rb)
    g.stamp("p3_sig")
    V.release(mark); A.release(amark)

P4_NS = 6
CSX_OFF = 147456
CSF_OFF = CSX_OFF + 4096
def p4(g):
    a, S, V, A = g.a, g.S, g.V, g.A
    st, vt, vl = g.s_t, g.v_t, g.v_l
    mark = V.mark(); amark = A.mark()
    NS = P4_NS
    csp = V(16, 4)
    a(f"s_lshl_b32 {st[0]}, {g.s_j}, 4")
    a(f"s_lshl_b32 {st[1]}, {g.s_w}, 2")
    a(f"s_add_u32 {st[0]}, {st[0]}, {st[1]}")
    a(f"s_lshl_b32 {st[0]}, {st[0]}, 10")
    a(f"s_add_u32 {st[0]}, {st[0]}, {CSGU_OFF}")
    a(f"v_lshl_add_u32 {vt[0]}, {vl}, 4, {st[0]}")
    for i in range(4):
        a(f"buffer_load_dwordx4 {csp.sub(4*i,4)}, {vt[0]}, {g.r_ws}, 0 offen offset:{1024*i} sc1")
    g.vm.add("csp", 4)
    v_dg = V(3); v_du = V(3)
    s_m0 = S()
    a(f"s_mov_b32 {st[2]}, 0x15555556")
    a(f"s_mul_i32 {st[0]}, {g.s_w}, 192")
    a(f"s_mul_i32 {st[1]}, {g.s_j}, 192")
    for j in range(3):
        a(f"v_add_u32 {vt[0]}, {st[0]}, {vl}")
        if j: a(f"v_add_u32 {vt[0]}, {64*j}, {vt[0]}")
        a(f"v_mul_hi_u32 {vt[1]}, {vt[0]}, {st[2]}")
        a(f"v_mul_u32_u24 {vt[2]}, 12, {vt[1]}")
        a(f"v_sub_u32 {vt[2]}, {vt[0]}, {vt[2]}")
        a(f"v_mul_u32_u24 {vt[1]}, 3072, {vt[1]}")
        a(f"v_add_u32 {vt[1]}, {st[1]}, {vt[1]}")
        a(f"v_lshl_add_u32 {v_dg[j]}, {vt[2]}, 4, {vt[1]}")
        a(f"v_xor_b32 {vt[3]}, 2, {vt[2]}")
        a(f"v_lshl_add_u32 {v_du[j]}, {vt[3]}, 4, {vt[1]}")
        if j:
            a(f"v_subrev_u32 {v_dg[j]}, {1024*j}, {v_dg[j]}")
            a(f"v_subrev_u32 {v_du[j]}, {1024*j}, {v_du[j]}")
    a(f"s_mul_i32 {s_m0}, {g.s_w}, 3072")
    def dma_stage(stg):
        slot = stg % NS
        L = [[f"s_mov_b32 {g.s_so2}, {stg*64*3072}", f"s_add_u32 m0, {s_m0}, {slot*24576}",
              f"buffer_load_dwordx4 {v_dg[0]}, {g.r_wg}, {g.s_so2} offen lds"]]
        for j in (1, 2): L.append([f"buffer_load_dwordx4 {v_dg[j]}, {g.r_wg}, {g.s_so2} offen offset:{1024*j} lds"])
        L.append([f"s_add_u32 m0, {s_m0}, {slot*24576+12288}", f"buffer_load_dwordx4 {v_du[0]}, {g.r_wu}, {g.s_so2} offen lds"])
        for j in (1, 2): L.append([f"buffer_load_dwordx4 {v_du[j]}, {g.r_wu}, {g.s_so2} offen offset:{1024*j} lds"])
        return L
    NPRE = 3
    for stg in range(NPRE):
        for grp in dma_stage(stg):
            for l in grp: a(l)
            g.vm.add(("d", stg))
    v_be = V(2); v_bo = V(2)
    a(f"v_lshrrev_b32 {vt[0]}, 4, {vl}")
    a(f"v_and_b32 {vt[1]}, 1, {vt[0]}")
    a(f"v_lshrrev_b32 {vt[0]}, 1, {vt[0]}")
    a(f"v_lshlrev_b32 {vt[0]}, 3, {vt[0]}")
    a(f"v_bfe_u32 {vt[2]}, {vl}, 2, 2")
    a(f"v_add_u32 {vt[0]}, {vt[0]}, {vt[2]}")
    a(f"v_mul_u32_u24 {vt[0]}, 192, {vt[0]}")
    a(f"v_and_b32 {vt[2]}, 3, {vl}")
    a(f"v_lshl_add_u32 {vt[0]}, {vt[2]}, 3, {vt[0]}")
    a(f"v_mul_u32_u24 {vt[2]}, 12288, {vt[1]}")
    a(f"v_add_u32 {vt[0]}, {vt[0]}, {vt[2]}")
    a(f"v_lshlrev_b32 {vt[1]}, 5, {vt[1]}")
    a(f"v_add_u32 {v_be[0]}, {vt[0]}, {vt[1]}")
    a(f"v_sub_u32 {v_bo[0]}, {vt[0]}, {vt[1]}")
    a(f"v_add_u32 {v_be[1]}, {3*24576}, {v_be[0]}")
    a(f"v_add_u32 {v_bo[1]}, {3*24576}, {v_bo[0]}")
    v_h = V()
    a(f"s_lshl_b32 {st[0]}, {g.s_rb}, 2")
    a(f"s_add_u32 {st[0]}, {st[0]}, {g.s_w}")
    a(f"s_mul_i32 {st[0]}, {st[0]}, 40960")
    a(f"s_add_u32 {st[0]}, {st[0]}, {H_OFF}")
    a(f"v_lshl_add_u32 {v_h}, {vl}, 4, {st[0]}")
    acc = V(96, 4); wf = [V(24, 2), V(24, 2)]
    hf = A(160, 4)
    for i in range(96): a(f"v_mov_b32 {acc[i]}, 0")
    g.waitvm("csp")
    for i in range(1, 4):
        for p in range(2):
            a(f"v_pk_add_f32 {csp.sub(2*p,2)}, {csp.sub(2*p,2)}, {csp.sub(4*i+2*p,2)}")
    a(f"s_lshl_b32 {st[0]}, {g.s_w}, 10")
    a(f"s_add_u32 {st[0]}, {st[0]}, {CSX_OFF}")
    a(f"v_lshl_add_u32 {vt[0]}, {vl}, 4, {st[0]}")
    a(f"ds_write_b128 {vt[0]}, {csp.sub(0,4)}")
    g.drain(0)
    g.poll(S3, g.s_rb)
    g.stamp("s3_done")
    PD = 6
    def hload(t):
        L = []
        if t % 4 == 0: L.append(f"s_mov_b32 {g.s_so}, {1024*t}")
        L.append(f"buffer_load_dwordx4 {hf.sub(4*t,4)}, {v_h}, {g.r_ws}, {g.s_so} offen offset:{1024*(t%4)} sc1")
        return L
    for t in range(PD):
        for l in hload(t): a(l)
        g.vm.add(("h", t))
    hs = V(8, 4); v_hs = V()
    a(f"s_lshl_b32 {st[0]}, {g.s_rb}, 7")
    a(f"s_lshl_b32 {st[1]}, {g.s_w}, 5")
    a(f"s_add_u32 {st[0]}, {st[0]}, {st[1]}")
    a(f"v_and_b32 {vt[0]}, 31, {vl}")
    a(f"v_add_u32 {vt[0]}, {st[0]}, {vt[0]}")
    a(f"v_lshlrev_b32 {vt[0]}, 6, {vt[0]}")
    a(f"v_lshrrev_b32 {vt[1]}, 5, {vl}")
    a(f"v_lshl_add_u32 {vt[0]}, {vt[1]}, 5, {vt[0]}")
    a(f"v_add_u32 {v_hs}, {HST_OFF}, {vt[0]}")
    a(f"buffer_load_dwordx4 {hs.sub(0,4)}, {v_hs}, {g.r_ws}, 0 offen sc1")
    a(f"buffer_load_dwordx4 {hs.sub(4,4)}, {v_hs}, {g.r_ws}, 0 offen offset:16 sc1")
    g.vm.add("hs", 2)
    cx = csp
    a(f"v_lshlrev_b32 {vt[0]}, 4, {vl}")
    a(f"v_add_u32 {vt[0]}, {CSX_OFF}, {vt[0]}")
    for i in range(4): a(f"ds_read_b128 {cx.sub(4*i,4)}, {vt[0]} offset:{1024*i}")
    a("s_waitcnt lgkmcnt(0)")
    for i in range(1, 4):
        for p in range(2):
            a(f"v_pk_add_f32 {cx.sub(2*p,2)}, {cx.sub(2*p,2)}, {cx.sub(4*i+2*p,2)}")
    a(f"s_lshl_b32 {st[0]}, {g.s_w}, 10")
    a(f"s_add_u32 {st[0]}, {st[0]}, {CSF_OFF}")
    a(f"v_lshl_add_u32 {vt[0]}, {vl}, 4, {st[0]}")
    a(f"ds_write_b128 {vt[0]}, {cx.sub(0,4)}")
    a("s_waitcnt lgkmcnt(0)")
    def reads(t):
        stg, u = t >> 2, t & 3; slot = stg % NS
        grp, sl = slot // 3, slot % 3
        out = []
        for b in range(6):
            base = v_be[grp] if b % 2 == 0 else v_bo[grp]
            for th in range(2):
                out.append(f"ds_read_b64_tr_b16 {wf[t&1].sub(4*b+2*th,2)}, {base} offset:{sl*24576 + (16*u+4*th)*192 + 32*b}")
        return out
    for l in reads(0): a(l)
    pend = []
    for stg in range(NPRE, NS): pend += [(grp, ("d", stg)) for grp in dma_stage(stg)]
    for t in range(40):
        stg, u = t >> 2, t & 3
        tags = [("h", t)]
        bar = (u == 1 and stg + 1 < 10)
        if bar: tags.append(("d", stg+1))
        vmn = g.vm.wait(*tags)
        rd = reads(t+1) if t + 1 < 40 else []
        if bar and stg >= 1 and stg - 1 + NS < 10:
            pend += [(grp, ("d", stg-1+NS)) for grp in dma_stage(stg-1+NS)]
        for b in range(6):
            lg = None
            if b % 2 == 0:
                lg = 2*(6-b-2) + (2*b if t + 1 < 40 else 0)
            g.wait(vmn if b == 0 else None, lg)
            if b == 0 and bar: a("s_barrier")
            a(f"v_mfma_f32_32x32x16_bf16 {acc.sub(16*b,16)}, {wf[t&1].sub(4*b,4)}, {hf.sub(4*t,4)}, {acc.sub(16*b,16)}")
            for l in rd[2*b:2*b+2]: a(l)
            if b == 1 and t + PD < 40:
                for l in hload(t+PD): a(l)
                g.vm.add(("h", t+PD))
            if pend and b in (3, 5):
                grp, tag = pend.pop(0)
                for l in grp: a(l)
                g.vm.add(tag)
        if t == 35:
            touch_wave(g, g.r_wd, 1280, 48, 5, 640, 0x33333334)
    assert not pend
    g.stamp("p4_loop")
    g.waitvm("hs")
    for p in (1, 2, 3):
        a(f"v_pk_add_f32 {hs.sub(0,2)}, {hs.sub(0,2)}, {hs.sub(2*p,2)}")
    a(f"v_mov_b32 {hs[2]}, {hs[0]}"); a(f"v_mov_b32 {hs[3]}, {hs[1]}")
    a(f"v_permlane32_swap_b32 {hs[0]}, {hs[2]}")
    a(f"v_permlane32_swap_b32 {hs[1]}, {hs[3]}")
    a(f"v_pk_add_f32 {hs.sub(0,2)}, {hs.sub(0,2)}, {hs.sub(2,2)}")
    nm = hs.sub(4, 2); r2 = hs.sub(6, 2)
    a(f"v_mul_f32 {nm[0]}, {f32hex(-1/640)}, {hs[0]}")
    a(f"v_mul_f32 {hs[1]}, {f32hex(1/640)}, {hs[1]}")
    a(f"v_fma_f32 {hs[1]}, -{nm[0]}, {nm[0]}, {hs[1]}")
    a(f"v_max_f32 {hs[1]}, 0, {hs[1]}")
    a(f"v_add_f32 {hs[1]}, {f32hex(1e-5)}, {hs[1]}")
    a(f"v_rcp_f32 {r2[0]}, {hs[1]}")
    v_cs = V(); v_ao = V()
    a(f"s_lshl_b32 {st[0]}, {g.s_w}, 10")
    a(f"s_add_u32 {st[0]}, {st[0]}, {CSF_OFF}")
    a(f"v_lshrrev_b32 {vt[0]}, 5, {vl}")
    a(f"v_lshl_add_u32 {v_cs}, {vt[0]}, 4, {st[0]}")
    a(f"s_lshl_b32 {st[0]}, {g.s_rb}, 3")
    a(f"s_lshl_b32 {st[1]}, {g.s_w}, 1")
    a(f"s_add_u32 {st[0]}, {st[0]}, {st[1]}")
    a(f"s_mul_i32 {st[0]}, {st[0]}, {48*1024}")
    a(f"s_mul_i32 {st[1]}, {g.s_j}, 3072")
    a(f"s_add_u32 {st[0]}, {st[0]}, {st[1]}")
    a(f"s_add_u32 {st[0]}, {st[0]}, {ACT_OFF}")
    a(f"v_bfe_u32 {vt[1]}, {vl}, 4, 1")
    a(f"v_mul_u32_u24 {vt[1]}, {48*1024}, {vt[1]}")
    a(f"v_lshl_add_u32 {vt[1]}, {vt[0]}, 8, {vt[1]}")
    a(f"v_and_b32 {vt[2]}, 15, {vl}")
    a(f"v_lshl_add_u32 {vt[1]}, {vt[2]}, 4, {vt[1]}")
    a(f"v_add_u32 {v_ao}, {st[0]}, {vt[1]}")
    cb = [wf[0].sub(0, 16), wf[1].sub(0, 16)]
    ob = [wf[0].sub(16, 4), wf[1].sub(16, 4)]
    def csreads(b):
        d = cb[b & 1]
        for q in range(2):
            a(f"ds_read_b128 {d.sub(4*q,4)}, {v_cs} offset:{64*b + 32*q}")
            a(f"ds_read_b128 {d.sub(8+4*q,4)}, {v_cs} offset:{512 + 64*b + 32*q}")
    csreads(0)
    for b in range(6):
        if b + 1 < 6: csreads(b+1)
        g.wait(None, 4 if b + 1 < 6 else 0)
        c = cb[b & 1]; X = acc.sub(16*b, 16); o = ob[b & 1]
        for p in range(8):
            a(f"v_pk_fma_f32 {X.sub(2*p,2)}, {c.sub(2*p,2)}, {nm}, {X.sub(2*p,2)} op_sel_hi:[1,0,1]")
        for e in range(8): a(f"v_max_f32 {X[e]}, 0, {X[e]}")
        for p in range(4):
            a(f"v_pk_mul_f32 {X.sub(8+2*p,2)}, {X.sub(8+2*p,2)}, {r2} op_sel_hi:[1,0]")
        for p in range(4):
            a(f"v_pk_mul_f32 {X.sub(2*p,2)}, {X.sub(2*p,2)}, {X.sub(8+2*p,2)}")
        for p in range(4):
            a(f"v_cvt_pk_bf16_f32 {o[p]}, {X[2*p]}, {X[2*p+1]}")
        a(f"buffer_store_dwordx4 {o}, {v_ao}, {g.r_ws}, 0 offen offset:{1024*(b>>1) + 512*(b&1)} sc1")
    g.drain()
    a("s_barrier")
    g.signal(S4, g.s_rb)
    g.stamp("p4_sig")
    V.release(mark); A.release(amark)

P5_NS = 6
P5_SLOT = 4*WPER
XCH_OFF = 0
def p5(g):
    a, S, V, A = g.a, g.S, g.V, g.A
    st, vt, vl = g.s_t, g.v_t, g.v_l
    mark = V.mark(); amark = A.mark()
    NS = P5_NS
    s_kh = S(); s_sh = S(); s_p2 = S(); s_m0 = S(); s_sob = S()
    a(f"s_and_b32 {s_kh}, {g.s_w}, 1")
    a(f"s_lshr_b32 {s_sh}, {g.s_w}, 1")
    wrow_setup(g, swap23=False)
    a(f"s_mul_i32 {s_m0}, {s_kh}, {2*WPER}")
    a(f"s_mul_i32 {st[0]}, {s_sh}, {WPER}")
    a(f"s_add_u32 {s_m0}, {s_m0}, {st[0]}")
    a(f"s_mul_i32 {s_sob}, {s_kh}, {768*1280}")
    a(f"s_mul_i32 {st[0]}, {s_sh}, {32*1280}")
    a(f"s_add_u32 {s_sob}, {s_sob}, {st[0]}")
    def dma_stage(stg):
        slot = stg % NS
        return wrow_dma(g, g.r_wd,
                        so_line=[f"s_add_u32 {g.s_wso}, {s_sob}, {stg*64*1280}"],
                        m0_line0=[f"s_add_u32 m0, {s_m0}, {slot*P5_SLOT}"],
                        m0_line4=[f"s_add_u32 m0, {s_m0}, {slot*P5_SLOT + 4096}"])
    NPRE = 3
    for stg in range(NPRE):
        for grp in dma_stage(stg):
            for l in grp: a(l)
            g.vm.add(("d", stg))
    v_ab = [V(2), V(2)]
    a(f"s_mul_i32 {st[0]}, {s_kh}, {2*WPER}")
    trw_base(g, v_ab[0], st[0])
    for i in range(2): a(f"v_add_u32 {v_ab[1][i]}, {3*P5_SLOT}, {v_ab[0][i]}")
    v_af = V(2)
    a(f"s_lshl_b32 {st[0]}, {g.s_rb64}, 2")
    a(f"s_lshl_b32 {st[1]}, {s_sh}, 1")
    a(f"s_add_u32 {st[0]}, {st[0]}, {st[1]}")
    a(f"s_mul_i32 {st[0]}, {st[0]}, 48")
    a(f"s_mul_i32 {st[1]}, {s_kh}, 24")
    a(f"s_add_u32 {st[0]}, {st[0]}, {st[1]}")
    a(f"s_lshl_b32 {st[0]}, {st[0]}, 10")
    a(f"s_add_u32 {st[0]}, {st[0]}, {ACT_OFF}")
    a(f"v_lshl_add_u32 {v_af[0]}, {vl}, 4, {st[0]}")
    a(f"v_add_u32 {v_af[1]}, {48*1024}, {v_af[0]}")
    acc = V(40, 4); wf = [V(20, 2), V(20, 2)]
    RING = 12
    af = A(8*RING, 4)
    for i in range(40): a(f"v_mov_b32 {acc[i]}, 0")
    g.drain()
    g.poll(S4, g.s_rb)
    g.stamp("s4_done")
    def aload(t):
        L = []
        if t % 4 == 0: L.append(f"s_mov_b32 {g.s_so}, {1024*t}")
        for sb in range(2):
            L.append(f"buffer_load_dwordx4 {af.sub(8*(t%RING)+4*sb,4)}, {v_af[sb]}, {g.r_ws}, {g.s_so} offen offset:{1024*(t%4)} sc1")
        return L
    PD = 8
    for t in range(PD):
        for l in aload(t): a(l)
        g.vm.add(("a", t), 2)
    def reads(t):
        stg, p2 = t >> 1, t & 1; slot = stg % NS
        bases = v_ab[slot // 3]; sl = slot % 3
        return [f"ds_read_b64_tr_b16 {wf[t&1].sub(4*nb+2*th,2)}, {bases[nb&1]} offset:{sl*P5_SLOT + (32*p2+8*th)*WROW + 32*nb}"
                for nb in range(5) for th in range(2)]
    for l in reads(0): a(l)
    pend = []
    for stg in range(NPRE, NS): pend += [(grp, ("d", stg)) for grp in dma_stage(stg)]
    for t in range(24):
        stg, u = t >> 1, t & 1
        tags = [("a", t)]
        bar = (u == 0 and stg + 1 < 12)
        if bar: tags.append(("d", stg+1))
        vmn = g.vm.wait(*tags)
        rd = reads(t+1) if t + 1 < 24 else []
        if bar and stg >= 1 and stg - 1 + NS < 12:
            pend += [(grp, ("d", stg-1+NS)) for grp in dma_stage(stg-1+NS)]
        k = 0
        for nb in range(5):
            lg = 2*(4-nb) + (2*nb if t + 1 < 24 else 0)
            g.wait(vmn if nb == 0 else None, lg)
            if nb == 0 and bar: a("s_barrier")
            for sb in range(2):
                X = acc.sub(20*sb+4*nb, 4)
                a(f"v_mfma_f32_16x16x32_bf16 {X}, {wf[t&1].sub(4*nb,4)}, {af.sub(8*(t%RING)+4*sb,4)}, {X}")
                if rd: a(rd[2*nb+sb])
            if nb == 1 and t + PD < 24:
                for l in aload(t+PD): a(l)
                g.vm.add(("a", t+PD), 2)
            if pend and nb in (0, 2, 3, 4):
                grp, tag = pend.pop(0)
                for l in grp: a(l)
                g.vm.add(tag)
    assert not pend
    g.stamp("p5_loop")
    a("s_barrier")
    a(f"s_mul_i32 {st[0]}, {g.s_w}, 5120")
    a(f"v_lshl_add_u32 {vt[0]}, {vl}, 4, {st[0]}")
    a(f"s_xor_b32 {st[1]}, {g.s_w}, 1")
    a(f"s_mul_i32 {st[1]}, {st[1]}, 5120")
    a(f"v_lshl_add_u32 {vt[1]}, {vl}, 4, {st[1]}")
    lk = a.newlabel("x1"); le = a.newlabel("xe")
    fin = wf[0]; oth = wf[1]
    a(f"s_cmp_eq_u32 {s_kh}, 0")
    a(f"s_cbranch_scc0 {lk}")
    for q in range(5): a(f"ds_write_b128 {vt[0]}, {acc.sub(20+4*q,4)} offset:{1024*q}")
    for i in range(20): a(f"v_mov_b32 {fin[i]}, {acc[i]}")
    a(f"s_branch {le}")
    a.label(lk)
    for q in range(5): a(f"ds_write_b128 {vt[0]}, {acc.sub(4*q,4)} offset:{1024*q}")
    for i in range(20): a(f"v_mov_b32 {fin[i]}, {acc[20+i]}")
    a.label(le)
    a("s_waitcnt lgkmcnt(0)")
    a("s_barrier")
    for q in range(5): a(f"ds_read_b128 {oth.sub(4*q,4)}, {vt[1]} offset:{1024*q}")
    xf = acc.sub(0, 20)
    for i in range(10):
        a(f"v_lshlrev_b32 {xf[2*i]}, 16, {g.hp[i]}")
        a(f"v_and_b32 {xf[2*i+1]}, 0xffff0000, {g.hp[i]}")
    for i in range(10):
        a(f"v_pk_add_f32 {fin.sub(2*i,2)}, {fin.sub(2*i,2)}, {xf.sub(2*i,2)}")
    a("s_waitcnt lgkmcnt(0)")
    for i in range(10):
        a(f"v_pk_add_f32 {fin.sub(2*i,2)}, {fin.sub(2*i,2)}, {oth.sub(2*i,2)}")
    op = acc.sub(20, 10)
    for i in range(10):
        a(f"v_cvt_pk_bf16_f32 {op[i]}, {fin[2*i]}, {fin[2*i+1]}")
    tmp4 = [acc.sub(0,4), acc.sub(4,4), acc.sub(8,4)]
    ad = oth.sub(0, 3)
    a(f"s_lshl_b32 {st[0]}, {g.s_rb64}, 2")
    a(f"s_add_u32 {st[0]}, {st[0]}, {g.s_w}")
    a(f"s_lshl_b32 {st[0]}, {st[0]}, 4")
    a(f"v_and_b32 {vt[0]}, 15, {vl}")
    a(f"v_add_u32 {vt[0]}, {st[0]}, {vt[0]}")
    a(f"v_mul_u32_u24 {vt[0]}, 1280, {vt[0]}")
    a(f"v_bfe_u32 {vt[1]}, {vl}, 4, 1")
    a(f"v_lshl_add_u32 {vt[0]}, {vt[1]}, 5, {vt[0]}")
    a(f"v_lshrrev_b32 {vt[2]}, 5, {vl}")
    a(f"v_lshl_add_u32 {vt[0]}, {vt[2]}, 4, {vt[0]}")
    a(f"s_mul_i32 {st[1]}, {g.s_ct}, 160")
    a(f"v_add_u32 {ad[0]}, {st[1]}, {vt[0]}")
    a(f"v_add_u32 {ad[1]}, 64, {ad[0]}")
    a(f"v_add_u32 {ad[2]}, 128, {ad[0]}")
    a(f"v_cmp_eq_u32 vcc, 0, {vt[1]}")
    a(f"v_mov_b32 {vt[3]}, {OOB:#x}")
    a(f"v_cndmask_b32 {ad[2]}, {vt[3]}, {ad[2]}, vcc")
    pair_store(g, op, tmp4, ad, g.r_out, "")
    g.stamp("p5_end")
    V.release(mark); A.release(amark)

def run_phases(g):
    p1(g)
    if g.stop_after == "p1": return
    p2(g)
    if g.stop_after == "p2": return
    p3(g)
    if g.stop_after == "p3": return
    p4(g)
    if g.stop_after == "p4": return
    p5(g)
```

```python
import sys, os
sys.path.insert(0, os.path.dirname(os.path.abspath(__file__)))
from asmlib import *
import post

CNT_OFF   = 0x0
STATX_OFF = 0x10000
CSQ_OFF   = 0x20000
CSGU_OFF  = 0x40000
KVP_OFF   = 0x100000
O_OFF     = 0x300000
H_OFF     = 0x600000
HST_OFF   = 0x900000
ACT_OFF   = 0xA00000
DUMP_OFF  = 0x1000000
WS_BYTES  = 0x4000000
S0R, S0C, S1, S2, S3, S4, S4B = range(7)
OOB = 0x7ffffff0
LOG2E = 1.4426950408889634

def f32hex(x):
    import struct
    return "0x%08x" % struct.unpack("<I", struct.pack("<f", x))[0]

class VM:
    def __init__(self): self.q = []
    def add(self, tag, n=1): self.q += [tag]*n
    def count_after(self, tag):
        if tag not in self.q: return None
        idx = max(i for i, x in enumerate(self.q) if x == tag)
        return len(self.q) - 1 - idx
    def wait(self, *tags):
        ns = [self.count_after(t) for t in tags]
        ns = [n for n in ns if n is not None]
        if not ns: return None
        n = min(ns)
        self.q = self.q[len(self.q)-n:] if n > 0 else []
        return min(n, 63)
    def drain(self): self.q = []

class Gen:
    def __init__(self, stop_after=None, dump=None, stamps=False):
        self.a = Asm()
        self.stop_after = stop_after
        self.dump = dump
        self.stamps = stamps
        self.S = Alloc("s", 3, 102)
        self.V = Alloc("v", 1, 256)
        self.A = Alloc("a", 0, 256)
        self.vm = VM()
        self.nstamp = 0

    def wait(self, vm=None, lgkm=None):
        p = []
        if vm is not None: p.append(f"vmcnt({vm})")
        if lgkm is not None: p.append(f"lgkmcnt({lgkm})")
        if p: self.a("s_waitcnt " + " ".join(p))
    def waitvm(self, *tags, lgkm=None):
        self.wait(self.vm.wait(*tags), lgkm)
    def drain(self, lgkm=None):
        self.vm.drain(); self.wait(0, lgkm)
    def stamp(self, name):
        if not self.stamps: return
        a = self.a
        i = self.nstamp; self.nstamp += 1
        self.stamp_names = getattr(self, "stamp_names", []) + [name]
        a(f"s_memtime {self.s_st}")
        a("s_waitcnt lgkmcnt(0)")
        a(f"v_writelane_b32 {self.v_stamp}, {self.s_st[0]}, {i}")

    def srd(self, name, ptr, nbytes):
        a = self.a
        r = self.S(4, 4, name)
        a(f"s_mov_b32 {r[0]}, {ptr[0]}")
        a(f"s_and_b32 {r[1]}, {ptr[1]}, 0xffff")
        a(f"s_mov_b32 {r[2]}, {nbytes}")
        a(f"s_mov_b32 {r[3]}, 0x20000")
        return r

    def prologue(self):
        a, S, V = self.a, self.S, self.V
        pk = R('s', 80, 16); p2 = R('s', 96, 4); p3 = R('s', 100, 2)
        a(f"s_load_dwordx16 {pk}, s[0:1], 0")
        a(f"s_load_dwordx4 {p2}, s[0:1], 64")
        a(f"s_load_dwordx2 {p3}, s[0:1], 80")
        a("s_cmp_ge_u32 s2, 256")
        a("s_cbranch_scc1 L_end")
        self.s_t = S(8, 2)
        st = self.s_t
        self.s_rb = S(); self.s_j = S(); self.s_w = S(); self.s_rb64 = S(); self.s_ct = S()
        self.s_so = S(); self.s_so2 = S(); self.s_cnt = S(); self.s_q = S(); self.s_xb = S()
        if self.stamps:
            self.s_st = S(2, 2)
        a(f"s_and_b32 {st[0]}, s2, 7")
        a(f"s_lshr_b32 {st[1]}, s2, 3")
        a(f"s_lshr_b32 {st[2]}, {st[0]}, 1")
        a(f"s_lshl_b32 {self.s_rb}, {st[2]}, 2")
        a(f"s_lshr_b32 {st[3]}, {st[1]}, 3")
        a(f"s_add_u32 {self.s_rb}, {self.s_rb}, {st[3]}")
        a(f"s_and_b32 {st[3]}, {st[0]}, 1")
        a(f"s_lshl_b32 {self.s_j}, {st[3]}, 3")
        a(f"s_and_b32 {st[4]}, {st[1]}, 7")
        a(f"s_add_u32 {self.s_j}, {self.s_j}, {st[4]}")
        a(f"s_lshl_b32 {self.s_rb64}, {st[2]}, 3")
        a(f"s_lshr_b32 {st[4]}, {st[1]}, 2")
        a(f"s_add_u32 {self.s_rb64}, {self.s_rb64}, {st[4]}")
        a(f"s_lshl_b32 {self.s_ct}, {st[3]}, 2")
        a(f"s_and_b32 {st[4]}, {st[1]}, 3")
        a(f"s_add_u32 {self.s_ct}, {self.s_ct}, {st[4]}")
        a(f"s_mov_b32 {self.s_q}, {st[1]}")
        a(f"s_mov_b32 {self.s_xb}, {st[3]}")
        self.v_l = V(); self.v_dummy = V(); self.v_t = V(8, 2)
        vt = self.v_t
        a(f"v_lshrrev_b32 {vt[0]}, 6, v0")
        a(f"v_and_b32 {self.v_l}, 63, v0")
        a(f"v_readfirstlane_b32 {self.s_w}, {vt[0]}")
        if self.stamps:
            self.v_stamp = V()
            a(f"v_mov_b32 {self.v_stamp}, 0")
        a("s_waitcnt lgkmcnt(0)")
        self.stamp("start")
        self.r_x    = self.srd("x",    pk.sub(0, 2), 2048*640*2)
        self.r_wqkv = self.srd("wqkv", pk.sub(2, 2), 640*1920*2)
        from phases import early_touch
        early_touch(self)
        self.r_wphi = self.srd("wphi", pk.sub(4, 2), 32*400*2)
        self.r_wo   = self.srd("wo",   pk.sub(6, 2), 640*640*2)
        self.r_wg   = self.srd("wg",   pk.sub(10, 2), 640*1536*2)
        self.r_wu   = self.srd("wu",   pk.sub(12, 2), 640*1536*2)
        self.r_wd   = self.srd("wd",   pk.sub(14, 2), 1536*640*2)
        self.r_out  = self.srd("out",  p2.sub(0, 2), 2048*640*2)
        self.r_dbg  = self.srd("dbg",  p2.sub(2, 2), 256)
        self.r_ws   = self.srd("ws",   p3, WS_BYTES)

    def finish(self):
        a = self.a
        if self.stamps:
            vt, st = self.v_t, self.s_t
            a(f"s_lshl_b32 {st[0]}, s2, 2")
            a(f"s_add_u32 {st[0]}, {st[0]}, {self.s_w}")
            a(f"s_lshl_b32 {st[0]}, {st[0]}, 8")
            a(f"s_add_u32 {st[0]}, {st[0]}, {WS_BYTES - 0x100000}")
            a(f"v_lshlrev_b32 {vt[0]}, 2, {self.v_l}")
            a(f"v_add_u32 {vt[0]}, {st[0]}, {vt[0]}")
            a(f"buffer_store_dword {self.v_stamp}, {vt[0]}, {self.r_ws}, 0 offen")
        a("s_waitcnt vmcnt(0)")
        a.label("L_end")
        a("s_endpgm")

    def dump_regs(self, regs, region=0):
        a, vt, st = self.a, self.v_t, self.s_t
        n = len(regs)
        a("s_nop 15"); a("s_nop 15")
        a(f"s_lshl_b32 {st[0]}, s2, 2")
        a(f"s_add_u32 {st[0]}, {st[0]}, {self.s_w}")
        a(f"s_mul_i32 {st[0]}, {st[0]}, {n*256}")
        a(f"s_add_u32 {st[0]}, {st[0]}, {DUMP_OFF + region}")
        a(f"v_lshlrev_b32 {vt[0]}, 2, {self.v_l}")
        a(f"v_add_u32 {vt[0]}, {st[0]}, {vt[0]}")
        for i, r in enumerate(regs):
            if i and i % 16 == 0: a(f"v_add_u32 {vt[0]}, 4096, {vt[0]}")
            a(f"buffer_store_dword {r}, {vt[0]}, {self.r_ws}, 0 offen offset:{256*(i%16)}")
        self.drain()

    def signal(self, sid, grp):
        a, st, vt = self.a, self.s_t, self.v_t
        l = a.newlabel("sig")
        a(f"s_cmp_lg_u32 {self.s_w}, 0")
        a(f"s_cbranch_scc1 {l}")
        a(f"s_lshl_b32 {st[0]}, {grp}, 8")
        a(f"s_add_u32 {st[0]}, {st[0]}, {CNT_OFF + sid*16*256}")
        a(f"v_mov_b32 {vt[0]}, {st[0]}")
        a(f"v_mov_b32 {vt[1]}, 1")
        a("s_mov_b64 exec, 1")
        a(f"buffer_atomic_add {vt[1]}, {vt[0]}, {self.r_ws}, 0 offen sc1")
        a("s_mov_b64 exec, -1")
        a.label(l)
    def poll(self, sid, grp, target=16, also=None):
        a, st, vt = self.a, self.s_t, self.v_t
        l = a.newlabel("pe"); lp = a.newlabel("pl")
        a(f"s_cmp_lg_u32 {self.s_w}, 0")
        a(f"s_cbranch_scc1 {l}")
        a(f"s_lshl_b32 {st[0]}, {grp}, 8")
        a(f"s_add_u32 {st[0]}, {st[0]}, {CNT_OFF + sid*16*256}")
        a(f"v_mov_b32 {vt[0]}, {st[0]}")
        if also:
            a(f"s_lshl_b32 {st[0]}, {also[1]}, 8")
            a(f"s_add_u32 {st[0]}, {st[0]}, {CNT_OFF + also[0]*16*256}")
            a(f"v_mov_b32 {vt[2]}, {st[0]}")
        a(f"s_mov_b32 {self.s_cnt}, 0")
        a.label(lp)
        a(f"buffer_load_dword {vt[1]}, {vt[0]}, {self.r_ws}, 0 offen sc1")
        if also:
            a(f"buffer_load_dword {vt[3]}, {vt[2]}, {self.r_ws}, 0 offen sc1")
        a("s_waitcnt vmcnt(0)")
        if also:
            a(f"v_min_u32 {vt[1]}, {vt[1]}, {vt[3]}")
        a(f"v_readfirstlane_b32 {st[1]}, {vt[1]}")
        a(f"s_add_u32 {self.s_cnt}, {self.s_cnt}, 1")
        a(f"s_cmp_ge_u32 {st[1]}, {target}")
        a(f"s_cbranch_scc1 {l}")
        a(f"s_cmp_lt_u32 {self.s_cnt}, 200000")
        a(f"s_cbranch_scc1 {lp}")
        a.label(l)
        a("s_barrier")

    def build(self):
        from phases import run_phases
        self.prologue()
        run_phases(self)
        self.finish()
        lines = self.a.lines
        lines = post.hazard_pass_fast(lines, verbose=True)
        lines = post.align_pass(lines, verbose=True)
        body = "\n".join(lines) + "\n"
        nv = 256 + max(self.A.hi, 0)
        hdr = header([f"; @launch grid=(256,1,1) block=(256,1,1) lds=163840"],
                     comments=["fused pre-LN hedgehog linear attention + ReGLU block, one persistent kernel (generated by gen/gen.py)"])
        print("vgpr hi", self.V.hi, "agpr hi", self.A.hi, "sgpr hi", self.S.hi)
        return hdr + kernel_begin(KN) + body + kernel_desc(KN, 512 if self.A.hi else 256, 102, 256)

if __name__ == "__main__":
    import argparse
    ap = argparse.ArgumentParser()
    ap.add_argument("-o", default="sequential_preLN__linear_kernel_hedgehog__glu_gated_reglu__prompt.s")
    ap.add_argument("--stop", default=None)
    ap.add_argument("--dump", default=None)
    ap.add_argument("--stamps", action="store_true")
    args = ap.parse_args()
    g = Gen(stop_after=args.stop, dump=args.dump, stamps=args.stamps)
    txt = g.build()
    open(args.o, "w").write(txt)
    if args.stamps:
        open(args.o + ".stamps", "w").write("\n".join(g.stamp_names))
```

```python
from asmlib import *
from gen import *
import gen as G

SEL_LO = 0x00003f80
SEL_HI = 0x3f800000
ONES2  = 0x3f803f80

P1_SLOT = 32768
T0_OFF  = 102400
T1_OFF  = 118784
VT_OFF  = 135168
KVX_OFF = 122880
OT_OFF  = 143360
OTJ_OFF = OT_OFF + 10240
CS_OFF  = 161792

def capture(g, fn):
    old = g.a
    g.a = Asm(); g.a.uid = old.uid
    fn()
    lines = g.a.lines
    old.uid = g.a.uid
    g.a = old
    return lines

def interleave(g, main, extra, every, start=0):
    extra = list(extra); n = 0
    for l in main:
        g.a.lines.append(l)
        s = l.strip()
        if s and not s.endswith(":") and not s.startswith(";"):
            n += 1
            if n >= start and (n - start) % every == 0 and extra:
                for e in extra.pop(0): g.a(e)
    for grp in extra:
        for e in grp: g.a(e)

def colsum_addr(g, v_out_off, kind, seg_of=None):
    a, st, vt, vl = g.a, g.s_t, g.v_t, g.v_l
    a(f"v_lshrrev_b32 {vt[1]}, 4, {vl}")
    a(f"v_and_b32 {vt[2]}, 15, {vl}")
    a(f"s_mul_i32 {st[0]}, {g.s_rb}, 40")
    a(f"v_add_u32 {vt[0]}, {st[0]}, {vt[1]}")
    a(f"s_lshl_b32 {st[2]}, {g.s_j}, 4")
    a(f"s_add_u32 {st[2]}, {st[2]}, {g.s_rb}")
    a(f"v_lshlrev_b32 {vt[6]}, 5, {vt[2]}")
    a(f"v_cmp_eq_u32 vcc, 0, {vt[1]}")
    a(f"v_mov_b32 {vt[7]}, {OOB:#x}")
    a(f"v_cndmask_b32 {vt[6]}, {vt[7]}, {vt[6]}, vcc")
    if kind == "qkv":
        seg_of(vt[4], vt[2], vt[5])
        a(f"v_mul_u32_u24 {vt[0]}, 3840, {vt[0]}")
        a(f"s_mul_i32 {st[1]}, {g.s_j}, 80")
        a(f"v_add3_u32 {vt[0]}, {vt[0]}, {vt[4]}, {st[1]}")
        a(f"s_lshl_b32 {st[2]}, {st[2]}, 9")
        a(f"s_add_u32 {st[2]}, {st[2]}, {CSQ_OFF}")
    else:
        a(f"v_mul_u32_u24 {vt[0]}, 3072, {vt[0]}")
        a(f"s_mul_i32 {st[1]}, {g.s_j}, 192")
        a(f"v_lshlrev_b32 {vt[4]}, 4, {vt[2]}")
        a(f"v_add3_u32 {vt[0]}, {vt[0]}, {vt[4]}, {st[1]}")
        a(f"v_cmp_gt_u32 vcc, 12, {vt[2]}")
        a(f"v_cndmask_b32 {vt[0]}, {vt[7]}, {vt[0]}, vcc")
        a(f"s_lshl_b32 {st[2]}, {st[2]}, 1")
        a(f"s_add_u32 {st[2]}, {st[2]}, {g.s_w}")
        a(f"s_sub_u32 {st[2]}, {st[2]}, 2")
        a(f"s_lshl_b32 {st[2]}, {st[2]}, 9")
        a(f"s_add_u32 {st[2]}, {st[2]}, {CSGU_OFF}")
    a(f"v_add_u32 {v_out_off}, {st[2]}, {vt[6]}")

def colsum_compute(g, sd, cs8, ct8, v_out_off, store=True):
    a = g.a
    for e in range(8): a(f"v_mov_b32 {cs8[e]}, 0")
    for i in range(10):
        for w in range(4):
            a(f"v_dot2c_f32_bf16 {cs8[2*w]}, {g.s_sel_lo}, {sd[4*i+w]}")
            a(f"v_dot2c_f32_bf16 {cs8[2*w+1]}, {g.s_sel_hi}, {sd[4*i+w]}")
    for sw in ("v_permlane32_swap_b32", "v_permlane16_swap_b32"):
        for e in range(8): a(f"v_mov_b32 {ct8[e]}, {cs8[e]}")
        for e in range(8): a(f"{sw} {ct8[e]}, {cs8[e]}")
        for e in range(8): a(f"v_add_f32 {cs8[e]}, {cs8[e]}, {ct8[e]}")
    if store:
        a(f"buffer_store_dwordx4 {cs8.sub(0,4)}, {v_out_off}, {g.r_ws}, 0 offen sc1")
        a(f"buffer_store_dwordx4 {cs8.sub(4,4)}, {v_out_off}, {g.r_ws}, 0 offen offset:16 sc1")

def touch_rows(g, srd, pitch, rows_per_wg, lines_per_row, col_byte_per_xb, magic, n_instr, first_instr=0, dst=None):
    st, vt, vl = g.s_t, g.v_t, g.v_l
    out = []
    for i in range(first_instr, first_instr + n_instr):
        L = [f"v_add_u32 {vt[0]}, {64*i}, {vl}",
             f"s_mov_b32 {st[5]}, {magic:#x}",
             f"v_mul_hi_u32 {vt[1]}, {vt[0]}, {st[5]}",
             f"v_mul_u32_u24 {vt[2]}, {lines_per_row}, {vt[1]}",
             f"v_sub_u32 {vt[2]}, {vt[0]}, {vt[2]}",
             f"s_mul_i32 {st[5]}, {g.s_q}, {rows_per_wg}",
             f"v_cmp_gt_u32 vcc, {rows_per_wg}, {vt[1]}",
             f"v_add_u32 {vt[1]}, {st[5]}, {vt[1]}",
             f"v_mul_u32_u24 {vt[1]}, {pitch}, {vt[1]}",
             f"v_lshl_add_u32 {vt[1]}, {vt[2]}, 7, {vt[1]}",
             f"s_mul_i32 {st[5]}, {g.s_xb}, {col_byte_per_xb}",
             f"v_add_u32 {vt[1]}, {st[5]}, {vt[1]}",
             f"v_mov_b32 {vt[2]}, {OOB:#x}",
             f"v_cndmask_b32 {vt[1]}, {vt[2]}, {vt[1]}, vcc",
             f"buffer_load_dword {g.v_dummy}, {vt[1]}, {srd}, 0 offen"]
        out.append(L)
    return out

def touch_wave(g, srd, pitch, rows_per_wg, lines_per_row, col_bytes, magic):
    a, st, vt, vl = g.a, g.s_t, g.v_t, g.v_l
    a(f"s_lshl_b32 {st[5]}, {g.s_w}, 6")
    a(f"v_add_u32 {vt[0]}, {st[5]}, {vl}")
    a(f"s_mov_b32 {st[5]}, {magic:#x}")
    a(f"v_mul_hi_u32 {vt[1]}, {vt[0]}, {st[5]}")
    a(f"v_mul_u32_u24 {vt[2]}, {lines_per_row}, {vt[1]}")
    a(f"v_sub_u32 {vt[2]}, {vt[0]}, {vt[2]}")
    a(f"s_mul_i32 {st[5]}, {g.s_q}, {rows_per_wg}")
    a(f"v_cmp_gt_u32 vcc, {rows_per_wg}, {vt[1]}")
    a(f"v_add_u32 {vt[1]}, {st[5]}, {vt[1]}")
    a(f"v_mul_u32_u24 {vt[1]}, {pitch}, {vt[1]}")
    a(f"v_lshl_add_u32 {vt[1]}, {vt[2]}, 7, {vt[1]}")
    a(f"s_mul_i32 {st[5]}, {g.s_xb}, {col_bytes}")
    a(f"v_add_u32 {vt[1]}, {st[5]}, {vt[1]}")
    a(f"v_mov_b32 {vt[2]}, {OOB:#x}")
    a(f"v_cndmask_b32 {vt[1]}, {vt[2]}, {vt[1]}, vcc")
    a(f"buffer_load_dword {g.v_dummy}, {vt[1]}, {srd}, 0 offen")
    g.vm.add("touch")

def p1_touch_w(g, i_expr_s):
    a, st, vt, vl = g.a, g.s_t, g.v_t, g.v_l
    a(f"v_and_b32 {vt[0]}, 15, {vl}")
    a(f"v_min_u32 {vt[1]}, 14, {vt[0]}")
    a(f"v_lshlrev_b32 {vt[1]}, 7, {vt[1]}")
    a(f"v_cmp_le_u32 vcc, 5, {vt[0]}")
    a(f"v_add_u32 {vt[2]}, 640, {vt[1]}")
    a(f"v_cndmask_b32 {vt[1]}, {vt[1]}, {vt[2]}, vcc")
    a(f"v_cmp_le_u32 vcc, 10, {vt[0]}")
    a(f"v_add_u32 {vt[2]}, 640, {vt[1]}")
    a(f"v_cndmask_b32 {vt[1]}, {vt[1]}, {vt[2]}, vcc")
    a(f"v_lshrrev_b32 {vt[2]}, 5, {vl}")
    a(f"v_lshlrev_b32 {vt[2]}, 6, {vt[2]}")
    a(f"v_bfe_u32 {vt[3]}, {vl}, 4, 1")
    a(f"v_add_u32 {vt[2]}, {vt[2]}, {vt[3]}")
    a(f"s_lshl_b32 {st[0]}, {g.s_q}, 1")
    a(f"s_lshl_b32 {st[1]}, {i_expr_s}, 7")
    a(f"s_add_u32 {st[0]}, {st[0]}, {st[1]}")
    a(f"v_add_u32 {vt[2]}, {st[0]}, {vt[2]}")
    a(f"v_mul_u32_u24 {vt[2]}, 3840, {vt[2]}")
    a(f"s_mul_i32 {st[1]}, {g.s_xb}, 640")
    a(f"v_add3_u32 {vt[2]}, {vt[2]}, {vt[1]}, {st[1]}")
    a(f"buffer_load_dword {g.v_dummy}, {vt[2]}, {g.r_wqkv}, 0 offen")

def p1_touch_x(g, i_const):
    a, st, vt, vl = g.a, g.s_t, g.v_t, g.v_l
    a(f"s_and_b32 {st[0]}, {g.s_q}, 7")
    a(f"s_lshl_b32 {st[0]}, {st[0]}, 4")
    a(f"s_lshl_b32 {st[1]}, {g.s_rb}, 7")
    a(f"s_add_u32 {st[0]}, {st[0]}, {st[1]}")
    a(f"v_and_b32 {vt[0]}, 15, {vl}")
    a(f"v_add_u32 {vt[0]}, {st[0]}, {vt[0]}")
    a(f"v_mul_u32_u24 {vt[0]}, 1280, {vt[0]}")
    a(f"v_lshrrev_b32 {vt[1]}, 4, {vl}")
    a(f"v_add_u32 {vt[1]}, {4*i_const}, {vt[1]}")
    a(f"v_cmp_gt_u32 vcc, 10, {vt[1]}")
    a(f"v_lshl_add_u32 {vt[0]}, {vt[1]}, 7, {vt[0]}")
    a(f"v_mov_b32 {vt[3]}, {OOB:#x}")
    a(f"v_cndmask_b32 {vt[0]}, {vt[3]}, {vt[0]}, vcc")
    a(f"buffer_load_dword {g.v_dummy}, {vt[0]}, {g.r_x}, 0 offen")

def early_touch(g):
    a, st, vt, vl, S = g.a, g.s_t, g.v_t, g.v_l, g.S
    l0 = a.newlabel("t0"); l3 = a.newlabel("t3"); le = a.newlabel("te")
    a(f"s_cmp_eq_u32 {g.s_w}, 0")
    a(f"s_cbranch_scc1 {l0}")
    a(f"s_cmp_eq_u32 {g.s_w}, 3")
    a(f"s_cbranch_scc1 {l3}")
    a(f"s_sub_u32 {st[2]}, {g.s_w}, 1")
    p1_touch_w(g, st[2])
    a(f"s_branch {le}")
    a.label(l0)
    p1_touch_x(g, 0)
    a(f"s_branch {le}")
    a.label(l3)
    s_pc = S(2, 2)
    a(f"s_getpc_b64 {s_pc}")
    a.label("L_pc")
    a(f"s_mul_i32 {st[0]}, {g.s_q}, 12")
    a(f"v_add_u32 {vt[0]}, {st[0]}, {vl}")
    a(f"v_lshlrev_b32 {vt[0]}, 7, {vt[0]}")
    a(f"s_mov_b32 {st[0]}, L_end-L_pc")
    a(f"v_cmp_gt_u32 vcc, {st[0]}, {vt[0]}")
    a(f"v_cndmask_b32 {vt[0]}, 0, {vt[0]}, vcc")
    a(f"s_mov_b64 exec, 0xfff")
    a(f"global_load_dword {g.v_dummy}, {vt[0]}, {s_pc}")
    a(f"s_mov_b64 exec, -1")
    a.label(le)
    g.vm.add("touch", 1)
    g.stamp("touch")

def late_touch(g, track=True):
    a, st = g.a, g.s_t
    l0 = a.newlabel("u0"); le = a.newlabel("ue"); l3 = a.newlabel("u3")
    a(f"s_cmp_eq_u32 {g.s_w}, 0")
    a(f"s_cbranch_scc1 {l0}")
    a(f"s_add_u32 {st[2]}, {g.s_w}, 1")
    p1_touch_w(g, st[2])
    a(f"s_cmp_eq_u32 {g.s_w}, 3")
    a(f"s_cbranch_scc0 {le}")
    p1_touch_x(g, 2)
    a(f"s_branch {le}")
    a.label(l0)
    p1_touch_x(g, 1)
    a.label(le)
    if track: g.vm.add("touch", 1)

def p1(g):
    a, S, V, A = g.a, g.S, g.V, g.A
    st, vt, vl = g.s_t, g.v_t, g.v_l
    NU = g.opt.get("nu", 4)
    s_hw = S(); s_wsr = S(); g.s_hw, g.s_wsr = s_hw, s_wsr
    s_m0x = S(); s_m0w = S(); s_sel_lo = S(); s_sel_hi = S(); g.s_sel_lo, g.s_sel_hi = s_sel_lo, s_sel_hi
    g.v_wr = V(6)
    g.mark12 = V.mark()
    phi0 = V(4, 2); phi1q = V(4, 2); phi1k = V(4, 2)
    aux = V(40, 4)
    g.phiq = [aux.sub(0, 12), aux.sub(12, 12)]
    ptmp = aux.sub(24, 12); v_pb = aux.sub(36, 2)
    g.s_wm0 = S(); g.s_wso = S()
    mark = V.mark()
    acc = V(64, 4)
    blk = V(80, 4)
    stt = [V(2, 2), V(2, 2)]
    mark_loop = V.mark()
    Lz = a.newlabel("nz")
    a(f"s_or_b32 {st[0]}, s2, {g.s_w}")
    a(f"s_cmp_eq_u32 {st[0]}, 0")
    a(f"s_cbranch_scc0 {Lz}")
    a(f"v_lshlrev_b32 {vt[0]}, 8, {vl}")
    a(f"v_add_u32 {vt[1]}, 16384, {vt[0]}")
    a(f"v_mov_b32 {vt[2]}, 0")
    a(f"buffer_store_dword {vt[2]}, {vt[0]}, {g.r_ws}, 0 offen offset:{CNT_OFF} sc1")
    a(f"buffer_store_dword {vt[2]}, {vt[1]}, {g.r_ws}, 0 offen offset:{CNT_OFF} sc1")
    a.label(Lz)
    def seg_of(dst, c, tmp):
        a(f"v_min_u32 {dst}, 14, {c}")
        a(f"v_lshlrev_b32 {dst}, 4, {dst}")
        a(f"v_cmp_le_u32 vcc, 5, {c}")
        a(f"v_add_u32 {tmp}, 1200, {dst}")
        a(f"v_cndmask_b32 {dst}, {dst}, {tmp}, vcc")
        a(f"v_cmp_le_u32 vcc, 10, {c}")
        a(f"v_add_u32 {tmp}, 1200, {dst}")
        a(f"v_cndmask_b32 {dst}, {dst}, {tmp}, vcc")
    sd = aux
    v_s0o = V(); v_pko = V()
    L_stats = a.newlabel("stats"); L_ld = a.newlabel("s0ld")
    a(f"v_mov_b32 {v_s0o}, {OOB:#x}")
    a(f"v_mov_b32 {v_pko}, {OOB:#x}")
    a(f"s_cmp_eq_u32 {g.s_w}, 3")
    a(f"s_cbranch_scc1 {L_ld}")
    a(f"s_cmp_eq_u32 {g.s_w}, 1")
    a(f"s_cbranch_scc0 {L_stats}")
    colsum_addr(g, v_s0o, "qkv", seg_of)
    for i in range(10):
        a(f"s_mov_b32 {g.s_so}, {i*4*3840}")
        a(f"buffer_load_dwordx4 {sd.sub(4*i,4)}, {vt[0]}, {g.r_wqkv}, {g.s_so} offen")
    a(f"v_lshlrev_b32 {vt[3]}, 2, {vt[1]}")
    a(f"v_xor_b32 {vt[3]}, {vt[3]}, {vt[2]}")
    a(f"v_lshlrev_b32 {vt[3]}, 4, {vt[3]}")
    a(f"v_lshl_add_u32 {vt[3]}, {vt[1]}, 8, {vt[3]}")
    a(f"s_mul_i32 {st[0]}, {g.s_rb}, {40*256}")
    a(f"s_mul_i32 {st[1]}, {g.s_j}, 163840")
    a(f"s_add_u32 {st[0]}, {st[0]}, {st[1]}")
    a(f"s_add_u32 {st[0]}, {st[0]}, {WPK_OFF}")
    a(f"v_add_u32 {v_pko}, {st[0]}, {vt[3]}")
    a(f"s_branch {L_ld}")
    a.label(L_stats)
    a(f"s_lshl_b32 {st[0]}, {g.s_rb}, 7")
    a(f"s_lshl_b32 {st[1]}, {g.s_j}, 3")
    a(f"s_add_u32 {st[0]}, {st[0]}, {st[1]}")
    a(f"s_lshl_b32 {st[1]}, {g.s_w}, 1")
    a(f"s_add_u32 {st[0]}, {st[0]}, {st[1]}")
    a(f"v_lshrrev_b32 {vt[0]}, 4, {vl}")
    a(f"v_add_u32 {vt[0]}, {st[0]}, {vt[0]}")
    a(f"v_and_b32 {vt[2]}, 15, {vl}")
    a(f"v_lshlrev_b32 {vt[4]}, 3, {vt[0]}")
    a(f"v_add_u32 {vt[4]}, {STATX_OFF}, {vt[4]}")
    a(f"v_mov_b32 {vt[7]}, {OOB:#x}")
    a(f"v_cmp_eq_u32 vcc, 0, {vt[2]}")
    a(f"v_cndmask_b32 {v_s0o}, {vt[7]}, {vt[4]}, vcc")
    a(f"v_mul_u32_u24 {vt[0]}, 1280, {vt[0]}")
    a(f"v_lshl_add_u32 {vt[0]}, {vt[2]}, 4, {vt[0]}")
    for i in range(5):
        a(f"buffer_load_dwordx4 {sd.sub(4*i,4)}, {vt[0]}, {g.r_x}, 0 offen offset:{256*i}")
    a.label(L_ld)
    g.stamp("role")
    v_dx = V(4); v_dw = V(4); v_dp = V()
    a(f"s_and_b32 {s_hw}, {g.s_w}, 1")
    a(f"s_lshr_b32 {s_wsr}, {g.s_w}, 1")
    a(f"s_lshl_b32 {st[0]}, {g.s_rb}, 7")
    a(f"s_lshl_b32 {st[1]}, {g.s_w}, 5")
    a(f"s_add_u32 {st[0]}, {st[0]}, {st[1]}")
    a(f"v_lshrrev_b32 {vt[0]}, 3, {vl}")
    a(f"v_add_u32 {vt[0]}, {st[0]}, {vt[0]}")
    a(f"v_mul_u32_u24 {vt[0]}, 1280, {vt[0]}")
    a(f"v_lshrrev_b32 {vt[1]}, 4, {vl}")
    a(f"v_and_b32 {vt[2]}, 7, {vl}")
    a(f"v_xor_b32 {vt[3]}, {vt[1]}, {vt[2]}")
    a(f"v_xor_b32 {vt[4]}, 4, {vt[3]}")
    for ii in range(4):
        a(f"v_lshl_add_u32 {v_dx[ii]}, {vt[3 + (ii & 1)]}, 4, {vt[0]}")
        if ii: a(f"v_add_u32 {v_dx[ii]}, {ii*(8*1280 - 1024)}, {v_dx[ii]}")
    a(f"s_lshl_b32 {st[0]}, {g.s_w}, 4")
    a(f"v_add_u32 {vt[0]}, {st[0]}, {vt[1]}")
    a(f"v_mul_u32_u24 {vt[0]}, 3840, {vt[0]}")
    a(f"v_and_b32 {vt[2]}, 15, {vl}")
    a(f"v_lshlrev_b32 {vt[3]}, 2, {vt[1]}")
    a(f"v_xor_b32 {vt[3]}, {vt[3]}, {vt[2]}")
    seg_of(vt[4], vt[3], vt[5])
    a(f"s_mul_i32 {st[1]}, {g.s_j}, 80")
    a(f"v_add3_u32 {v_dw[0]}, {vt[0]}, {vt[4]}, {st[1]}")
    for ii in range(1, 4):
        a(f"v_add_u32 {v_dw[ii]}, {ii*(4*3840 - 1024)}, {v_dw[0]}")
    a(f"s_lshl_b32 {s_m0x}, {g.s_w}, 12")
    a(f"s_add_u32 {s_m0w}, {s_m0x}, 16384")
    PKF = "" if g.opt.get("pknosc1") else " sc1"
    def dma_x(stg):
        if g.opt.get("nox") and stg >= 3: return []
        slot = stg % 4
        L = [[f"s_mov_b32 {g.s_so}, {stg*128}", f"s_add_u32 m0, {s_m0x}, {slot*P1_SLOT}",
              f"buffer_load_dwordx4 {v_dx[0]}, {g.r_x}, {g.s_so} offen lds"]]
        for ii in range(1, 4):
            L.append([f"s_add_u32 m0, {s_m0x}, {slot*P1_SLOT}"] * 0 + [f"buffer_load_dwordx4 {v_dx[ii]}, {g.r_x}, {g.s_so} offen offset:{1024*ii} lds"])
        return L
    def dma_w(stg):
        if g.opt.get("now") and stg >= 3: return []
        slot = stg % 4
        if stg < NU:
            L = [[f"s_mov_b32 {g.s_so2}, {stg*64*3840}", f"s_add_u32 m0, {s_m0w}, {slot*P1_SLOT}",
                  f"buffer_load_dwordx4 {v_dw[0]}, {g.r_wqkv}, {g.s_so2} offen lds"]]
            for ii in range(1, 4):
                L.append([f"buffer_load_dwordx4 {v_dw[ii]}, {g.r_wqkv}, {g.s_so2} offen offset:{1024*ii} lds"])
        else:
            L = [[f"s_mov_b32 {g.s_so2}, {stg*16384}", f"s_add_u32 m0, {s_m0w}, {slot*P1_SLOT}",
                  f"buffer_load_dwordx4 {v_dp}, {g.r_ws}, {g.s_so2} offen{PKF} lds"]]
            for ii in range(1, 4):
                L.append([f"buffer_load_dwordx4 {v_dp}, {g.r_ws}, {g.s_so2} offen offset:{1024*ii}{PKF} lds"])
        return L
    def issue(groups, tag):
        for grp in groups:
            for l in grp: a(l)
            g.vm.add(tag)
    if g.opt.get("p1rep"):
        s_rep = S()
        a(f"s_mov_b32 {s_rep}, 0")
        a.label("L_p1rep")
        g.stamp("rep")
    for stg in range(3):
        issue(dma_x(stg) + dma_w(stg), ("d", stg))
        g.stamp(f"st{stg}")
    a(f"s_mul_i32 {st[0]}, {g.s_j}, 163840")
    a(f"s_add_u32 {st[0]}, {st[0]}, {s_m0x}")
    a(f"s_add_u32 {st[0]}, {st[0]}, {WPK_OFF}")
    a(f"v_lshl_add_u32 {v_dp}, {vl}, 4, {st[0]}")
    a(f"s_mov_b32 {s_sel_lo}, {SEL_LO:#x}")
    a(f"s_mov_b32 {s_sel_hi}, {SEL_HI:#x}")
    v_bx = [V(4), V(4)]; v_aw = [V(2), V(2)]
    a(f"v_and_b32 {vt[0]}, 31, {vl}")
    a(f"s_lshl_b32 {st[0]}, {s_wsr}, 6")
    a(f"v_add_u32 {vt[1]}, {st[0]}, {vt[0]}")
    a(f"v_lshlrev_b32 {vt[1]}, 7, {vt[1]}")
    a(f"v_bfe_u32 {vt[2]}, {vl}, 1, 3")
    a(f"v_lshrrev_b32 {vt[3]}, 5, {vl}")
    a(f"v_xor_b32 {vt[2]}, {vt[2]}, {vt[3]}")
    for u in range(4):
        a(f"v_xor_b32 {vt[4]}, {2*u}, {vt[2]}")
        a(f"v_lshl_add_u32 {v_bx[0][u]}, {vt[4]}, 4, {vt[1]}")
        a(f"v_add_u32 {v_bx[1][u]}, 65536, {v_bx[0][u]}")
    a(f"v_lshrrev_b32 {vt[0]}, 5, {vl}")
    a(f"v_bfe_u32 {vt[1]}, {vl}, 2, 2")
    a(f"v_lshl_add_u32 {vt[0]}, {vt[0]}, 3, {vt[1]}")
    a(f"v_lshlrev_b32 {vt[0]}, 8, {vt[0]}")
    a(f"v_add_u32 {vt[0]}, 16384, {vt[0]}")
    a(f"v_and_b32 {vt[2]}, 3, {vl}")
    a(f"v_bfe_u32 {vt[3]}, {vl}, 4, 1")
    a(f"s_mul_i32 {st[0]}, {s_hw}, 5")
    a(f"v_lshlrev_b32 {vt[4]}, 3, {vt[2]}")
    a(f"s_mov_b32 {st[1]}, 0x15150e04")
    a(f"v_lshrrev_b32_e64 {vt[5]}, {vt[4]}, {st[1]}")
    a(f"v_and_b32 {vt[5]}, 0xff, {vt[5]}")
    a(f"s_mov_b32 {st[1]}, 0x18171614")
    a(f"v_lshrrev_b32_e64 {vt[7]}, {vt[4]}, {st[1]}")
    a(f"v_and_b32 {vt[7]}, 0xff, {vt[7]}")
    a(f"v_cmp_eq_u32 vcc, 1, {vt[3]}")
    a(f"v_cndmask_b32 {vt[4]}, {vt[2]}, {vt[5]}, vcc")
    a(f"v_add_u32 {vt[4]}, {st[0]}, {vt[4]}")
    a(f"v_add_u32 {vt[5]}, 10, {vt[2]}")
    a(f"v_cndmask_b32 {vt[5]}, {vt[5]}, {vt[7]}, vcc")
    a(f"v_add_u32 {vt[5]}, {st[0]}, {vt[5]}")
    a(f"v_lshlrev_b32 {vt[6]}, 3, {vt[1]}")
    for nb in range(2):
        a(f"v_xor_b32 {vt[7]}, {vt[4+nb]}, {vt[6]}")
        a(f"v_lshl_add_u32 {v_aw[0][nb]}, {vt[7]}, 3, {vt[0]}")
        a(f"v_add_u32 {v_aw[1][nb]}, 65536, {v_aw[0][nb]}")
    for i in range(64): a(f"v_mov_b32 {acc[i]}, 0")
    g.stamp("setup")
    Lf = a.newlabel("nf")
    a(f"s_or_b32 {st[0]}, s2, {g.s_w}")
    a(f"s_cmp_eq_u32 {st[0]}, 0")
    a(f"s_cbranch_scc0 {Lf}")
    a(f"s_waitcnt vmcnt({24 + 5})")
    a(f"v_mov_b32 {vt[0]}, 0")
    a(f"v_mov_b32 {vt[1]}, 1")
    a("s_mov_b64 exec, 1")
    a(f"buffer_store_dword {vt[1]}, {vt[0]}, {g.r_dbg}, 0 offen sc1")
    a("s_mov_b64 exec, -1")
    a.label(Lf)
    def wait_flag(v_flag):
        lp = a.newlabel("fl"); lo = a.newlabel("flok")
        a(f"v_readfirstlane_b32 {st[0]}, {v_flag}")
        a(f"s_mov_b32 {g.s_cnt}, 0")
        a(f"s_cmp_eq_u32 {st[0]}, 1")
        a(f"s_cbranch_scc1 {lo}")
        a.label(lp)
        a(f"v_mov_b32 {vt[0]}, 0")
        a(f"buffer_load_dword {v_flag}, {vt[0]}, {g.r_dbg}, 0 offen sc1")
        a("s_waitcnt vmcnt(0)")
        a(f"v_readfirstlane_b32 {st[0]}, {v_flag}")
        a(f"s_add_u32 {g.s_cnt}, {g.s_cnt}, 1")
        a(f"s_cmp_eq_u32 {st[0]}, 1")
        a(f"s_cbranch_scc1 {lo}")
        a(f"s_cmp_lt_u32 {g.s_cnt}, 200000")
        a(f"s_cbranch_scc1 {lp}")
        a.label(lo)
    L_st2 = a.newlabel("st2"); L_s0e = a.newlabel("s0e")
    v_flag = V()
    a(f"v_mov_b32 {v_flag}, 0")
    a(f"s_cmp_eq_u32 {g.s_w}, 3")
    a(f"s_cbranch_scc1 {L_s0e}")
    a(f"s_waitcnt vmcnt(24)")
    a(f"s_cmp_eq_u32 {g.s_w}, 1")
    a(f"s_cbranch_scc0 {L_st2}")
    cs8 = blk.sub(16, 8); ct8 = blk.sub(24, 8)
    if NU < 10:
        for i in range(10):
            a(f"buffer_store_dwordx4 {sd.sub(4*i,4)}, {v_pko}, {g.r_ws}, 0 offen offset:{1024*(i%4)} sc1")
            if i % 4 == 3: a(f"v_add_u32 {v_pko}, 4096, {v_pko}")
        a(f"v_mov_b32 {vt[0]}, 0")
        a(f"buffer_load_dword {v_flag}, {vt[0]}, {g.r_dbg}, 0 offen sc1")
    colsum_compute(g, sd, cs8, ct8, v_s0o, store=False)
    if NU < 10:
        a("s_waitcnt vmcnt(0)")
        wait_flag(v_flag)
        a(f"s_lshl_b32 {st[0]}, {g.s_j}, 8")
        a(f"s_add_u32 {st[0]}, {st[0]}, {CNT_OFF + S0P*4096}")
        a(f"v_mov_b32 {vt[0]}, {st[0]}")
        a(f"v_mov_b32 {vt[2]}, 1")
        a("s_mov_b64 exec, 1")
        a(f"buffer_atomic_add {vt[2]}, {vt[0]}, {g.r_ws}, 0 offen sc1")
        a("s_mov_b64 exec, -1")
    a(f"buffer_store_dwordx4 {cs8.sub(0,4)}, {v_s0o}, {g.r_ws}, 0 offen sc1")
    a(f"buffer_store_dwordx4 {cs8.sub(4,4)}, {v_s0o}, {g.r_ws}, 0 offen offset:16 sc1")
    a(f"s_branch {L_s0e}")
    a.label(L_st2)
    s_ones = st[4]
    a(f"s_mov_b32 {s_ones}, {ONES2:#x}")
    for e in range(4): a(f"v_mov_b32 {cs8[e]}, 0")
    for i in range(20):
        a(f"v_dot2c_f32_bf16 {cs8[i%2]}, {s_ones}, {sd[i]}")
        a(f"v_dot2c_f32_bf16 {cs8[2+i%2]}, {sd[i]}, {sd[i]}")
    a(f"v_add_f32 {cs8[0]}, {cs8[0]}, {cs8[1]}")
    a(f"v_add_f32 {cs8[2]}, {cs8[2]}, {cs8[3]}")
    for ctl in ("quad_perm:[1,0,3,2]", "quad_perm:[2,3,0,1]", "row_half_mirror", "row_mirror"):
        a(f"v_add_f32_dpp {cs8[0]}, {cs8[0]}, {cs8[0]} {ctl} row_mask:0xf bank_mask:0xf")
        a(f"v_add_f32_dpp {cs8[2]}, {cs8[2]}, {cs8[2]} {ctl} row_mask:0xf bank_mask:0xf")
    a(f"v_mul_f32 {cs8[0]}, {f32hex(1/640)}, {cs8[0]}")
    a(f"v_mul_f32 {cs8[2]}, {f32hex(1/640)}, {cs8[2]}")
    a(f"v_fma_f32 {cs8[2]}, -{cs8[0]}, {cs8[0]}, {cs8[2]}")
    a(f"v_max_f32 {cs8[2]}, 0, {cs8[2]}")
    a(f"v_add_f32 {cs8[2]}, {f32hex(1e-5)}, {cs8[2]}")
    a(f"v_rsq_f32 {cs8[1]}, {cs8[2]}")
    a(f"buffer_store_dwordx2 {cs8.sub(0,2)}, {v_s0o}, {g.r_ws}, 0 offen sc1")
    a.label(L_s0e)
    g.stamp("s0cmp")
    a(f"v_mov_b32 {vt[0]}, 0")
    a(f"buffer_load_dword {v_flag}, {vt[0]}, {g.r_dbg}, 0 offen sc1"); g.vm.add("flagld")
    fa = [blk.sub(16*i, 8) for i in range(3)]; fb = [blk.sub(16*i+8, 8) for i in range(3)]
    def ACC(nb, sb): return acc.sub(16*(2*nb+sb), 16)
    def reads(t):
        stg, u = t >> 2, t & 3
        slot = stg % 4; grp, sl = slot >> 1, slot & 1
        p = t % 3
        def ra(nb, th): return f"ds_read_b64_tr_b16 {fa[p].sub(4*nb+2*th,2)}, {v_aw[grp][nb]} offset:{sl*P1_SLOT + (16*u+4*th)*256}"
        def rbx(sb): return f"ds_read_b128 {fb[p].sub(4*sb,4)}, {v_bx[grp][u]} offset:{sl*P1_SLOT + sb*4096}"
        return [ra(0,0), ra(0,1), rbx(0), rbx(1), ra(1,0), ra(1,1)]
    g.waitvm(("d", 0))
    a("s_barrier")
    g.stamp("p1_first")
    for l in reads(0) + reads(1): a(l)
    v_cnt = V(2); v_cadr = V(2); v_pc = V(); v_pca = V()
    csl = blk.sub(48, 32)
    v_sta = V(); v_csa = V()
    pend = [(grp, ("d", 3)) for grp in dma_x(3) + dma_w(3)]
    tb = capture(g, lambda: late_touch(g, track=False))
    pend.insert(2, ([l.strip() for l in tb if l.strip()], "touch"))
    s_par = S(2, 2)
    a(f"s_and_b32 {st[0]}, {g.s_w}, 1")
    a(f"s_cmp_eq_u32 {st[0]}, 1")
    a(f"s_cselect_b64 {s_par}, -1, 0")
    a(f"s_mov_b64 vcc, {s_par}")
    T_PKLD, T_PKCHK = 5, 9
    T_S0LD, T_S0CHK, T_PHI, T_TOUCH = 18, 23, 31, 32
    for t in range(40):
        stg, u = t >> 2, t & 3
        p = t % 3
        bar = (u == 1 and stg + 1 < 10)
        vmn = None
        if bar:
            vmn = g.vm.wait(("d", stg+1))
        rd = reads(t+2) if t + 2 < 40 else []
        if g.opt.get("nord"): rd = []
        if g.opt.get("nobar") and stg >= 3: bar = False
        if (u == 1 and stg + 1 < 10) and stg >= 1 and stg + 3 < 10:
            nx = stg + 3
            if nx == NU and NU < 10 and t < T_PKCHK:
                pend += [(grp, ("d", nx)) for grp in dma_x(nx)]
            else:
                pend += [(grp, ("d", nx)) for grp in dma_x(nx) + dma_w(nx)]
        order = [(0,0),(0,1),(1,0),(1,1)]
        for m, (nb, sb) in enumerate(order):
            if m == 0:
                if t == T_PKCHK and NU < 10:
                    l = a.newlabel("pk"); lp = a.newlabel("pkl")
                    g.waitvm("pkcnt")
                    a(f"s_cmp_lg_u32 {g.s_w}, 0")
                    a(f"s_cbranch_scc1 {l}")
                    a(f"s_mov_b32 {g.s_cnt}, 0")
                    a.label(lp)
                    a(f"v_readfirstlane_b32 {st[0]}, {v_pc}")
                    a(f"s_add_u32 {g.s_cnt}, {g.s_cnt}, 1")
                    a(f"s_cmp_ge_u32 {st[0]}, 16")
                    a(f"s_cbranch_scc1 {l}")
                    a(f"buffer_load_dword {v_pc}, {v_pca}, {g.r_ws}, 0 offen sc1")
                    a("s_waitcnt vmcnt(0)")
                    a(f"s_cmp_lt_u32 {g.s_cnt}, 200000")
                    a(f"s_cbranch_scc1 {lp}")
                    a.label(l)
                    vmn = g.vm.wait(("d", stg+1)) if vmn is None else vmn
                g.wait(vmn, 6 if t + 1 < 40 else 0)
                if bar:
                    a("s_barrier")
                    if t == T_PKCHK and NU < 10:
                        pend[0:0] = [(grp, ("d", NU)) for grp in dma_w(NU)]
                    if stg == 2:
                        l = a.newlabel("s0sig")
                        a(f"s_cmp_lg_u32 {g.s_w}, 0")
                        a(f"s_cbranch_scc1 {l}")
                        wait_flag(v_flag)
                        a(f"s_lshl_b32 {st[0]}, {g.s_rb}, 8")
                        a(f"s_add_u32 {st[0]}, {st[0]}, {CNT_OFF + S0R*4096}")
                        a(f"s_lshl_b32 {st[1]}, {g.s_j}, 8")
                        a(f"s_add_u32 {st[1]}, {st[1]}, {CNT_OFF + S0C*4096}")
                        a(f"v_mov_b32 {vt[0]}, {st[0]}")
                        a(f"v_mov_b32 {vt[1]}, {st[1]}")
                        a(f"v_mov_b32 {vt[2]}, 1")
                        a("s_mov_b64 exec, 1")
                        a(f"buffer_atomic_add {vt[2]}, {vt[0]}, {g.r_ws}, 0 offen sc1")
                        a(f"buffer_atomic_add {vt[2]}, {vt[1]}, {g.r_ws}, 0 offen sc1")
                        a("s_mov_b64 exec, -1")
                        a.label(l)
            a(f"v_mfma_f32_32x32x16_bf16 {ACC(nb,sb)}, {fa[p].sub(4*nb,4)}, {fb[p].sub(4*sb,4)}, {ACC(nb,sb)}")
            for l in rd[(0,2,4,5)[m]:(2,4,5,6)[m]]: a(l)
            if g.opt.get("stag", 1):
                if m % 2 == 0:
                    cur = pend.pop(0) if pend else None
                    if cur and m == 2 and len(pend) > 6 and not any(x.endswith(":") for x in cur[0]):
                        cur = (cur[0] + pend[0][0], cur[1]); extra_tag = pend.pop(0)[1]
                    else: extra_tag = None
                if cur:
                    grp, tag = cur
                    single = any(x.endswith(":") for x in grp)
                    if single:
                        if m % 2 == 0:
                            for l in grp: a(l)
                            a(f"s_mov_b64 vcc, {s_par}")
                    else:
                        lsk = a.newlabel("ds")
                        a(f"s_cbranch_vcc{'nz' if m % 2 == 0 else 'z'} {lsk}")
                        for l in grp: a(l)
                        a.label(lsk)
                    if m % 2 == 1:
                        g.vm.add(tag)
                        if extra_tag: g.vm.add(extra_tag)
                        if g.opt.get("sched"): print("P1 step", t, "gap", m, "issue", tag, extra_tag)
            else:
                npop = 0 if m == 0 else (1 if (m >= 2 or len(pend) > 6) else 0)
                for _ in range(npop):
                    if pend:
                        grp, tag = pend.pop(0)
                        for l in grp: a(l)
                        g.vm.add(tag)
        if t == T_PKLD and NU < 10:
            a(f"s_lshl_b32 {st[0]}, {g.s_j}, 8")
            a(f"s_add_u32 {st[0]}, {st[0]}, {CNT_OFF + S0P*4096}")
            a(f"v_mov_b32 {v_pca}, {st[0]}")
            a(f"buffer_load_dword {v_pc}, {v_pca}, {g.r_ws}, 0 offen sc1")
            g.vm.add("pkcnt")
        if t == T_S0LD:
            a(f"s_lshl_b32 {st[0]}, {g.s_rb}, 8")
            a(f"s_add_u32 {st[0]}, {st[0]}, {CNT_OFF + S0R*4096}")
            a(f"s_lshl_b32 {st[1]}, {g.s_j}, 8")
            a(f"s_add_u32 {st[1]}, {st[1]}, {CNT_OFF + S0C*4096}")
            a(f"v_mov_b32 {v_cadr[0]}, {st[0]}")
            a(f"v_mov_b32 {v_cadr[1]}, {st[1]}")
            a(f"buffer_load_dword {v_cnt[0]}, {v_cadr[0]}, {g.r_ws}, 0 offen sc1")
            a(f"buffer_load_dword {v_cnt[1]}, {v_cadr[1]}, {g.r_ws}, 0 offen sc1")
            g.vm.add("s0cnt", 2)
        if t in (4, 8, 16, 24, 32): g.stamp(f"p1_t{t}")
        if t == T_S0CHK:
            lp = a.newlabel("s0w"); lo = a.newlabel("s0wd")
            g.waitvm("s0cnt")
            a(f"s_mov_b32 {g.s_cnt}, 0")
            a.label(lp)
            a(f"v_min_u32 {vt[0]}, {v_cnt[0]}, {v_cnt[1]}")
            a(f"s_add_u32 {g.s_cnt}, {g.s_cnt}, 1")
            a(f"v_readfirstlane_b32 {st[0]}, {vt[0]}")
            a(f"s_cmp_ge_u32 {st[0]}, 16")
            a(f"s_cbranch_scc1 {lo}")
            a(f"buffer_load_dword {v_cnt[0]}, {v_cadr[0]}, {g.r_ws}, 0 offen sc1")
            a(f"buffer_load_dword {v_cnt[1]}, {v_cadr[1]}, {g.r_ws}, 0 offen sc1")
            a("s_waitcnt vmcnt(0)")
            a(f"s_cmp_lt_u32 {g.s_cnt}, 200000")
            a(f"s_cbranch_scc1 {lp}")
            a.label(lo)
            a(f"s_lshl_b32 {st[0]}, {g.s_rb}, 7")
            a(f"s_lshl_b32 {st[1]}, {s_wsr}, 6")
            a(f"s_add_u32 {st[0]}, {st[0]}, {st[1]}")
            a(f"v_and_b32 {v_sta}, 31, {vl}")
            a(f"v_add_u32 {v_sta}, {st[0]}, {v_sta}")
            a(f"v_lshlrev_b32 {v_sta}, 3, {v_sta}")
            a(f"v_add_u32 {v_sta}, {STATX_OFF}, {v_sta}")
            a(f"buffer_load_dwordx2 {stt[0]}, {v_sta}, {g.r_ws}, 0 offen sc1")
            a(f"buffer_load_dwordx2 {stt[1]}, {v_sta}, {g.r_ws}, 0 offen offset:256 sc1")
            a(f"s_lshl_b32 {st[0]}, {g.s_j}, 13")
            a(f"s_add_u32 {st[0]}, {st[0]}, {CSQ_OFF}")
            a(f"v_lshlrev_b32 {v_csa}, 3, {vl}")
            a(f"v_add_u32 {v_csa}, {st[0]}, {v_csa}")
            for i in range(16):
                if i == 8: a(f"v_add_u32 {v_csa}, 4096, {v_csa}")
                a(f"buffer_load_dwordx2 {csl.sub(2*i,2)}, {v_csa}, {g.r_ws}, 0 offen offset:{512*(i%8)} sc1")
            g.vm.add("s0data", 18)
        if t == T_PHI:
            a(f"v_and_b32 {vt[0]}, 31, {vl}")
            a(f"v_lshrrev_b32 {vt[1]}, 3, {vt[0]}")
            a(f"v_and_b32 {vt[2]}, 3, {vt[0]}")
            a(f"v_lshl_add_u32 {vt[1]}, {vt[1]}, 2, {vt[2]}")
            a(f"v_bfe_u32 {vt[2]}, {vt[0]}, 2, 1")
            a(f"v_mul_u32_u24 {vt[2]}, 10, {vt[2]}")
            a(f"v_add_u32 {vt[2]}, {vt[2]}, {vt[1]}")
            a(f"s_lshl_b32 {st[0]}, {g.s_j}, 1")
            a(f"s_add_u32 {st[0]}, {st[0]}, {s_hw}")
            a(f"s_mul_i32 {st[0]}, {st[0]}, 800")
            a(f"v_lshl_add_u32 {vt[2]}, {vt[2]}, 1, {st[0]}")
            a(f"v_cmp_gt_u32 vcc, 10, {vt[1]}")
            a(f"v_mov_b32 {vt[7]}, {OOB:#x}")
            a(f"v_cndmask_b32 {v_pb[1]}, {vt[7]}, {vt[2]}, vcc")
            a(f"v_lshrrev_b32 {vt[3]}, 5, {vl}")
            a(f"v_mul_u32_u24 {vt[3]}, 160, {vt[3]}")
            a(f"v_add_u32 {vt[2]}, {vt[2]}, {vt[3]}")
            a(f"v_cndmask_b32 {v_pb[0]}, {vt[7]}, {vt[2]}, vcc")
            for jj in range(8):
                d = jj + (4 if jj >= 4 else 0)
                op = "buffer_load_ushort" if jj % 2 == 0 else "buffer_load_short_d16_hi"
                a(f"{op} {ptmp[jj]}, {v_pb[0]}, {g.r_wphi}, 0 offen offset:{40*d}")
            for jj in range(4):
                op = "buffer_load_ushort" if jj % 2 == 0 else "buffer_load_short_d16_hi"
                a(f"{op} {ptmp[8+jj]}, {v_pb[1]}, {g.r_wphi}, 0 offen offset:{40*(16+jj)}")
            g.vm.add("phi", 12)
        if t in (T_TOUCH, T_TOUCH+1, T_TOUCH+2) and g.stop_after not in ("p1", "p2"):
            lists = [(g.r_wg, 3072, 20, 12, 1536, 0x15555556), (g.r_wu, 3072, 20, 12, 1536, 0x15555556),
                     (g.r_wo, 1280, 20, 5, 640, 0x33333334)]
            if not g.opt.get("notouch2"): touch_wave(g, *lists[t - T_TOUCH])
        if t in (T_PKLD, T_S0LD, T_S0CHK, T_PHI, T_TOUCH, T_TOUCH+1, T_TOUCH+2):
            a(f"s_mov_b64 vcc, {s_par}")
    assert not pend
    g.stamp("p1_loop")
    if g.opt.get("p1rep"):
        lr = a.newlabel("repd")
        a(f"s_cmp_eq_u32 {s_rep}, 0")
        a(f"s_cbranch_scc0 {lr}")
        a(f"s_mov_b32 {s_rep}, 1")
        a("s_waitcnt vmcnt(0) lgkmcnt(0)")
        a("s_barrier")
        a("s_branch L_p1rep")
        a.label(lr)
    V.release(mark_loop)
    g.waitvm("phi")
    for q in range(4): a(f"v_or_b32 {phi0[q]}, {ptmp[2*q]}, {ptmp[2*q+1]}")
    a(f"v_or_b32 {ptmp[8]}, {ptmp[8]}, {ptmp[9]}")
    a(f"v_or_b32 {ptmp[9]}, {ptmp[10]}, {ptmp[11]}")
    a(f"v_cmp_gt_u32 vcc, 32, {vl}")
    for q in range(2):
        a(f"v_cndmask_b32 {phi1q[q]}, 0, {ptmp[8+q]}, vcc")
        a(f"v_cndmask_b32 {phi1k[q]}, {ptmp[8+q]}, 0, vcc") if False else None
    a(f"v_cmp_le_u32 vcc, 32, {vl}")
    for q in range(2):
        a(f"v_cndmask_b32 {phi1k[q]}, 0, {ptmp[8+q]}, vcc")
    for q in range(2, 4):
        a(f"v_mov_b32 {phi1q[q]}, 0"); a(f"v_mov_b32 {phi1k[q]}, 0")
    for k in (8, 4, 2, 1):
        for i in range(k):
            a(f"v_pk_add_f32 {csl.sub(2*i,2)}, {csl.sub(2*i,2)}, {csl.sub(2*(i+k),2)}")
    a(f"s_lshl_b32 {st[0]}, {g.s_w}, 9")
    a(f"s_add_u32 {st[0]}, {st[0]}, {CS_OFF}")
    a(f"v_lshl_add_u32 {vt[0]}, {vl}, 3, {st[0]}")
    a(f"ds_write_b64 {vt[0]}, {csl.sub(0,2)}")
    a(f"s_mul_i32 {st[1]}, {s_hw}, 80")
    a(f"s_add_u32 {st[0]}, {st[0]}, {st[1]}")
    a(f"v_lshrrev_b32 {vt[1]}, 5, {vl}")
    a(f"v_lshl_add_u32 {vt[2]}, {vt[1]}, 4, {st[0]}")
    a(f"v_mul_u32_u24 {vt[3]}, 160, {vt[1]}")
    a(f"v_add_u32 {vt[3]}, {st[0]}, {vt[3]}")
    a(f"v_mov_b32 {vt[4]}, {st[0]}")
    cs = csl
    a("s_waitcnt lgkmcnt(0)")
    a(f"v_lshl_add_u32 {vt[5]}, {vt[1]}, 5, {st[0]}")
    csrd = [(0, 0, vt[2], 0), (0, 1, vt[2], 32), (0, 2, vt[3], 64), (0, 3, vt[4], 21*16),
            (1, 0, vt[2], 10*16), (1, 1, vt[2], 12*16), (1, 2, vt[5], 20*16), (1, 3, vt[2], 23*16)]
    for nb, rq, ad, off in csrd:
        a(f"ds_read_b128 {cs.sub(16*nb+4*rq,4)}, {ad} offset:{off}")
    nm = [V(2, 2), V(2, 2)]; sa = [V(2, 2), V(2, 2)]; rs2 = [V(2, 2), V(2, 2)]
    for sb in range(2):
        a(f"v_sub_f32 {nm[sb][0]}, 0, {stt[sb][0]}")
        a(f"v_mul_f32 {sa[sb][0]}, {f32hex(LOG2E)}, {stt[sb][1]}")
        a(f"v_sub_f32 {sa[sb][1]}, 0, {sa[sb][0]}")
        a(f"v_mov_b32 {rs2[sb][0]}, {stt[sb][1]}")
    a("s_barrier")
    a("s_waitcnt lgkmcnt(0)")
    PK = blk.sub(0, 32)
    def P(nb, sb): return PK.sub(8*(2*nb+sb), 8)
    for sb in range(2):
        for nb in range(2):
            for p in range(8):
                a(f"v_pk_fma_f32 {ACC(nb,sb).sub(2*p,2)}, {cs.sub(16*nb+2*p,2)}, {nm[sb]}, {ACC(nb,sb).sub(2*p,2)} op_sel_hi:[1,0,1]")
        for nb, p in ((1,4),(1,5),(1,6),(1,7),(0,6),(0,7)):
            a(f"v_pk_mul_f32 {ACC(nb,sb).sub(2*p,2)}, {ACC(nb,sb).sub(2*p,2)}, {rs2[sb]} op_sel_hi:[1,0]")
        for nb in range(2):
            for p in range(8):
                a(f"v_cvt_pk_bf16_f32 {P(nb,sb)[p]}, {ACC(nb,sb)[2*p]}, {ACC(nb,sb)[2*p+1]}")
    PKk = [ACC(0,0), ACC(0,1)]; PKq = [ACC(1,0), ACC(1,1)]
    for sb in range(2):
        a(f"v_mfma_f32_32x32x16_bf16 {PKk[sb]}, {phi0}, {P(1,sb).sub(0,4)}, 0")
        a(f"v_mfma_f32_32x32x16_bf16 {PKk[sb]}, {phi1k}, {P(0,sb).sub(4,4)}, {PKk[sb]}")
    for sb in range(2):
        a(f"v_mfma_f32_32x32x16_bf16 {PKq[sb]}, {phi0}, {P(0,sb).sub(0,4)}, 0")
        a(f"v_mfma_f32_32x32x16_bf16 {PKq[sb]}, {phi1q}, {P(0,sb).sub(4,4)}, {PKq[sb]}")
    v_wa = V(4)
    a(f"v_and_b32 {vt[0]}, 31, {vl}")
    a(f"s_lshl_b32 {st[0]}, {s_wsr}, 6")
    a(f"v_add_u32 {vt[1]}, {st[0]}, {vt[0]}")
    a(f"v_lshlrev_b32 {vt[1]}, 6, {vt[1]}")
    a(f"s_lshl_b32 {st[1]}, {s_hw}, 13")
    a(f"v_add_u32 {vt[1]}, {st[1]}, {vt[1]}")
    a(f"v_bfe_u32 {vt[2]}, {vl}, 1, 2")
    a(f"v_lshrrev_b32 {vt[3]}, 5, {vl}")
    def waddr(dst, unit_expr_const=None, unit_reg=None, sub_reg=None, sub_const=0):
        if unit_reg is None:
            a(f"v_xor_b32 {vt[5]}, {unit_expr_const}, {vt[2]}")
        else:
            a(f"v_xor_b32 {vt[5]}, {unit_reg}, {vt[2]}")
        a(f"v_lshl_add_u32 {dst}, {vt[5]}, 4, {vt[1]}")
        if sub_reg is not None:
            a(f"v_lshl_add_u32 {dst}, {sub_reg}, 3, {dst}")
        elif sub_const:
            a(f"v_add_u32 {dst}, {8*sub_const}, {dst}")
    v_va = V(3)
    a(f"v_xor_b32 {vt[4]}, 1, {vt[3]}")
    waddr(v_va[0], unit_reg=vt[3])
    a(f"v_add_u32 {vt[6]}, 1, {vt[3]}")
    waddr(v_va[1], unit_reg=vt[6], sub_reg=vt[4])
    a(f"v_lshlrev_b32 {vt[6]}, 1, {vt[3]}")
    waddr(v_va[2], unit_reg=vt[6], sub_const=1)
    for i in range(3): a(f"v_add_u32 {v_va[i]}, {VT_OFF}, {v_va[i]}")
    for sb in range(2):
        a(f"ds_write_b64 {v_va[0]}, {P(1,sb).sub(4,2)} offset:{sb*2048}")
        a(f"ds_write_b64 {v_va[1]}, {P(1,sb).sub(6,2)} offset:{sb*2048}")
        a(f"ds_write_b64 {v_va[2]}, {P(0,sb).sub(6,2)} offset:{sb*2048}")
    ones4 = blk.sub(44, 4)
    a(f"v_mov_b32 {ones4[0]}, 0x3f80"); a(f"v_mov_b32 {ones4[1]}, 0")
    a(f"v_mov_b32 {ones4[2]}, 0x3f80"); a(f"v_mov_b32 {ones4[3]}, 0")
    a(f"v_add_u32 {vt[6]}, {st[0]}, {vl}")
    a(f"v_lshlrev_b32 {vt[6]}, 6, {vt[6]}")
    a(f"v_add_u32 {vt[6]}, {st[1]}, {vt[6]}")
    a(f"v_xor_b32 {vt[5]}, 3, {vt[2]}")
    a(f"v_lshl_add_u32 {vt[6]}, {vt[5]}, 4, {vt[6]}")
    a(f"v_add_u32 {vt[6]}, {VT_OFF}, {vt[6]}")
    a(f"ds_write_b128 {vt[6]}, {ones4}")
    v_ta = V(4)
    for t in range(4):
        waddr(v_ta[t], unit_expr_const=t, sub_reg=vt[3])
        a(f"v_add_u32 {v_ta[t]}, {T0_OFF}, {v_ta[t]}")
    tmp = blk.sub(48, 32)
    def softmax(pin, sb, out):
        M, N, T2 = tmp[0], tmp[1], tmp[2]
        ep = tmp.sub(4, 10); en = tmp.sub(14, 10); cc = tmp.sub(24, 4)
        a(f"v_max3_f32 {M}, {pin[0]}, {pin[1]}, {pin[2]}")
        a(f"v_max3_f32 {N}, -{pin[0]}, -{pin[1]}, -{pin[2]}")
        for i in (3, 5, 7):
            a(f"v_max3_f32 {M}, {M}, {pin[i]}, {pin[i+1]}")
            a(f"v_max3_f32 {N}, {N}, -{pin[i]}, -{pin[i+1]}")
        a(f"v_max_f32 {M}, {M}, {pin[9]}")
        a(f"v_max_f32_e64 {N}, {N}, -{pin[9]}")
        a(f"v_permlane32_swap_b32 {M}, {N}")
        a(f"v_max_f32 {M}, {M}, {N}")
        a(f"v_mov_b32 {N}, {M}")
        a(f"v_permlane32_swap_b32 {M}, {N}")
        a(f"v_mul_f32 {cc[0]}, {sa[sb][1]}, {M}")
        a(f"v_mul_f32 {cc[2]}, {sa[sb][1]}, {N}")
        for p in range(5):
            a(f"v_pk_fma_f32 {ep.sub(2*p,2)}, {pin.sub(2*p,2)}, {sa[sb]}, {cc.sub(0,2)} op_sel_hi:[1,0,0]")
            a(f"v_pk_fma_f32 {en.sub(2*p,2)}, {pin.sub(2*p,2)}, {sa[sb]}, {cc.sub(2,2)} op_sel:[0,1,0] op_sel_hi:[1,1,0]")
        for e in range(10):
            a(f"v_exp_f32 {ep[e]}, {ep[e]}")
            a(f"v_exp_f32 {en[e]}, {en[e]}")
        sp, sn = cc.sub(0, 2), cc.sub(2, 2)
        a(f"v_pk_add_f32 {sp}, {ep.sub(0,2)}, {ep.sub(2,2)}")
        a(f"v_pk_add_f32 {sn}, {en.sub(0,2)}, {en.sub(2,2)}")
        for p in range(2, 5):
            a(f"v_pk_add_f32 {sp}, {sp}, {ep.sub(2*p,2)}")
            a(f"v_pk_add_f32 {sn}, {sn}, {en.sub(2*p,2)}")
        a(f"v_add_f32 {M}, {sp[0]}, {sp[1]}")
        a(f"v_add_f32 {N}, {sn[0]}, {sn[1]}")
        a(f"v_permlane32_swap_b32 {M}, {N}")
        a(f"v_add_f32 {M}, {M}, {N}")
        a(f"v_mov_b32 {N}, {M}")
        a(f"v_permlane32_swap_b32 {M}, {N}")
        a(f"v_rcp_f32 {cc[0]}, {M}")
        a(f"v_rcp_f32 {cc[2]}, {N}")
        for p in range(5):
            a(f"v_pk_mul_f32 {ep.sub(2*p,2)}, {ep.sub(2*p,2)}, {cc.sub(0,2)} op_sel_hi:[1,0]")
            a(f"v_pk_mul_f32 {en.sub(2*p,2)}, {en.sub(2*p,2)}, {cc.sub(2,2)} op_sel_hi:[1,0]")
        for p in range(5):
            a(f"v_cvt_pk_bf16_f32 {out[p]}, {ep[2*p]}, {ep[2*p+1]}")
            a(f"v_cvt_pk_bf16_f32 {out[5+p]}, {en[2*p]}, {en[2*p+1]}")
    phik = blk.sub(32, 10)
    for sb in range(2):
        softmax(PKk[sb], sb, phik)
        for t in range(4):
            a(f"ds_write_b64 {v_ta[t]}, {phik.sub(2*t,2)} offset:{sb*2048}")
        a(f"ds_write_b64 {v_ta[0]}, {phik.sub(8,2)} offset:{T1_OFF - T0_OFF + sb*2048}")
    g.stamp("p1_ksm")
    a("s_waitcnt lgkmcnt(0)")
    a("s_barrier")
    v_ka = V(2); v_kb = V(2)
    a(f"v_lshrrev_b32 {vt[0]}, 5, {vl}")
    a(f"v_bfe_u32 {vt[1]}, {vl}, 2, 2")
    a(f"v_lshl_add_u32 {vt[0]}, {vt[0]}, 3, {vt[1]}")
    a(f"v_lshlrev_b32 {vt[0]}, 6, {vt[0]}")
    a(f"v_bfe_u32 {vt[2]}, {vl}, 4, 1")
    a(f"v_bfe_u32 {vt[3]}, {vl}, 1, 1")
    a(f"v_lshl_add_u32 {vt[2]}, {vt[2]}, 1, {vt[3]}")
    a(f"v_lshrrev_b32 {vt[1]}, 1, {vt[1]}")
    a(f"v_xor_b32 {vt[2]}, {vt[2]}, {vt[1]}")
    a(f"v_and_b32 {vt[3]}, 1, {vl}")
    a(f"v_lshlrev_b32 {vt[3]}, 3, {vt[3]}")
    a(f"v_add_u32 {vt[0]}, {vt[0]}, {vt[3]}")
    a(f"s_lshl_b32 {st[1]}, {s_hw}, 13")
    a(f"s_mul_i32 {st[2]}, {s_wsr}, {T1_OFF - T0_OFF}")
    a(f"s_add_u32 {st[2]}, {st[2]}, {st[1]}")
    a(f"s_add_u32 {st[2]}, {st[2]}, {T0_OFF}")
    a(f"s_add_u32 {st[1]}, {st[1]}, {VT_OFF}")
    for th in range(2):
        a(f"v_xor_b32 {vt[4]}, {2*th}, {vt[2]}")
        a(f"v_lshl_add_u32 {vt[4]}, {vt[4]}, 4, {vt[0]}")
        a(f"v_add_u32 {v_ka[th]}, {st[2]}, {vt[4]}")
        a(f"v_add_u32 {v_kb[th]}, {st[1]}, {vt[4]}")
    kf = blk.sub(0, 64)
    for u in range(8):
        for th in range(2):
            a(f"ds_read_b64_tr_b16 {kf.sub(8*u+2*th,2)}, {v_ka[th]} offset:{(16*u+4*th)*64}")
            a(f"ds_read_b64_tr_b16 {kf.sub(8*u+4+2*th,2)}, {v_kb[th]} offset:{(16*u+4*th)*64}")
    KVD = PKk[0]
    for u in range(8):
        g.wait(None, min(15, 4*(7-u)))
        c = "0" if u == 0 else str(KVD)
        a(f"v_mfma_f32_32x32x16_bf16 {KVD}, {kf.sub(8*u,4)}, {kf.sub(8*u+4,4)}, {c}")
    kvp = PKk[1].sub(0, 8)
    a(f"s_lshl_b32 {st[0]}, {g.s_j}, 4")
    a(f"s_add_u32 {st[0]}, {st[0]}, {g.s_rb}")
    a(f"s_lshl_b32 {st[0]}, {st[0]}, 1")
    a(f"s_add_u32 {st[0]}, {st[0]}, {s_hw}")
    a(f"s_mul_i32 {st[0]}, {st[0]}, 2560")
    a(f"s_add_u32 {st[0]}, {st[0]}, {KVP_OFF}")
    for p in range(8):
        a(f"v_cvt_pk_bf16_f32 {kvp[p]}, {KVD[2*p]}, {KVD[2*p+1]}")
    lb = a.newlabel("kvb"); le = a.newlabel("kve")
    a(f"s_cmp_eq_u32 {s_wsr}, 0")
    a(f"s_cbranch_scc0 {lb}")
    a(f"v_lshl_add_u32 {vt[0]}, {vl}, 4, {st[0]}")
    a(f"buffer_store_dwordx4 {kvp.sub(0,4)}, {vt[0]}, {g.r_ws}, 0 offen sc1")
    a(f"buffer_store_dwordx4 {kvp.sub(4,4)}, {vt[0]}, {g.r_ws}, 0 offen offset:1024 sc1")
    a(f"s_branch {le}")
    a.label(lb)
    a(f"v_lshl_add_u32 {vt[0]}, {vl}, 3, {st[0]}")
    a(f"buffer_store_dwordx2 {kvp.sub(0,2)}, {vt[0]}, {g.r_ws}, 0 offen offset:2048 sc1")
    a.label(le)
    g.drain()
    a("s_barrier")
    g.signal(S1, g.s_j)
    g.stamp("p1_sig")
    def qsm():
        for sb in range(2):
            softmax(PKq[sb], sb, g.phiq[sb].sub(0, 10))
            g.a(f"v_mov_b32 {g.phiq[sb][10]}, 0")
            g.a(f"v_mov_b32 {g.phiq[sb][11]}, 0")
    if g.stop_after in ("p1", "p2"):
        qsm()
    else:
        wrow_setup(g, swap23=True)
        a_save = a
        def qsm2():
            nonlocal a
            a = g.a
            qsm()
            a = a_save
        Lw0 = a.newlabel("qw0"); Lq = a.newlabel("qe"); lg = a.newlabel("gul"); lu = a.newlabel("guu"); lskip = a.newlabel("gus")
        gsd = blk.sub(0, 40); gcs = blk.sub(40, 8); gct = blk.sub(56, 8); gout = V()
        a(f"v_mov_b32 {gout}, {OOB:#x}")
        a(f"s_cmp_eq_u32 {g.s_w}, 0")
        a(f"s_cbranch_scc1 {Lw0}")
        a(f"s_cmp_lt_u32 {g.s_w}, 2")
        a(f"s_cbranch_scc1 {lg}")
        colsum_addr(g, gout, "gu")
        a(f"s_cmp_eq_u32 {g.s_w}, 2")
        a(f"s_cbranch_scc0 {lu}")
        for i in range(10):
            a(f"s_mov_b32 {g.s_so}, {i*4*3072}")
            a(f"buffer_load_dwordx4 {gsd.sub(4*i,4)}, {vt[0]}, {g.r_wg}, {g.s_so} offen")
        a(f"s_branch {lg}")
        a.label(lu)
        for i in range(10):
            a(f"s_mov_b32 {g.s_so}, {i*4*3072}")
            a(f"buffer_load_dwordx4 {gsd.sub(4*i,4)}, {vt[0]}, {g.r_wu}, {g.s_so} offen")
        a.label(lg)
        main = capture(g, qsm2)
        extra = []
        for i in range(6):
            extra += wrow_dma(g, g.r_wo, period=i, stride=3)
        interleave(g, main, extra, 6, start=2)
        l7 = a.newlabel("p7")
        a(f"s_cmp_eq_u32 {g.s_w}, 3")
        a(f"s_cbranch_scc1 {l7}")
        for grp in wrow_dma(g, g.r_wo, period=6, stride=3):
            for l in grp: a(l)
        a.label(l7)
        a(f"s_cmp_lt_u32 {g.s_w}, 2")
        a(f"s_cbranch_scc1 {Lq}")
        a("s_waitcnt vmcnt(36)")
        colsum_compute(g, gsd, gcs, gct, gout)
        a(f"s_branch {Lq}")
        a.label(Lw0)
        qsm()
        a.label(Lq)
    g.stamp("p1_qsm")
    if g.dump == "p1":
        g.dump_regs([g.phiq[sb][i] for sb in range(2) for i in range(10)])
    V.release(mark)

def p2(g):
    a, S, V, A = g.a, g.S, g.V, g.A
    st, vt, vl = g.s_t, g.v_t, g.v_l
    s_hw, s_wsr = g.s_hw, g.s_wsr
    mark = V.mark()
    g.poll(S1, g.s_j)
    g.stamp("s1_done")
    gat = V(80, 4)
    va = V(2)
    a(f"s_lshl_b32 {st[0]}, {g.s_j}, 4")
    a(f"s_lshl_b32 {st[1]}, {s_wsr}, 3")
    a(f"s_add_u32 {st[0]}, {st[0]}, {st[1]}")
    a(f"s_lshl_b32 {st[0]}, {st[0]}, 1")
    a(f"s_add_u32 {st[0]}, {st[0]}, {s_hw}")
    a(f"s_mul_i32 {st[0]}, {st[0]}, 2560")
    a(f"s_add_u32 {st[0]}, {st[0]}, {KVP_OFF}")
    a(f"v_lshl_add_u32 {va[0]}, {vl}, 4, {st[0]}")
    a(f"v_lshl_add_u32 {va[1]}, {vl}, 3, {st[0]}")
    for i in range(8):
        a(f"s_mov_b32 {g.s_so}, {i*5120}")
        a(f"buffer_load_dwordx4 {gat.sub(10*i,4)}, {va[0]}, {g.r_ws}, {g.s_so} offen sc1")
        a(f"buffer_load_dwordx4 {gat.sub(10*i+4,4)}, {va[0]}, {g.r_ws}, {g.s_so} offen offset:1024 sc1")
        a(f"buffer_load_dwordx2 {gat.sub(10*i+8,2)}, {va[1]}, {g.r_ws}, {g.s_so} offen offset:2048 sc1")
        g.vm.add(("g", i), 3)
    if g.stop_after not in ("p1", "p2"):
        g.xr = R("v", 246, 10); V.limit = 246
        a(f"s_lshl_b32 {st[0]}, {g.s_rb64}, 2")
        a(f"s_add_u32 {st[0]}, {st[0]}, {g.s_w}")
        a(f"s_lshl_b32 {st[1]}, {st[0]}, 4")
        a(f"v_and_b32 {vt[0]}, 15, {vl}")
        a(f"v_add_u32 {vt[0]}, {st[1]}, {vt[0]}")
        a(f"v_mul_u32_u24 {vt[1]}, 1280, {vt[0]}")
        a(f"v_lshrrev_b32 {vt[2]}, 4, {vl}")
        a(f"v_lshl_add_u32 {vt[1]}, {vt[2]}, 3, {vt[1]}")
        a(f"s_mul_i32 {st[2]}, {g.s_ct}, 160")
        a(f"v_add_u32 {vt[1]}, {st[2]}, {vt[1]}")
        for nb in range(5):
            a(f"buffer_load_dwordx2 {g.xr.sub(2*nb,2)}, {vt[1]}, {g.r_x}, 0 offen offset:{32*nb}")
        g.vm.add("xres", 5)
    ks = V(20, 4)
    for e in range(20): a(f"v_mov_b32 {ks[e]}, 0")
    for i in range(8):
        g.waitvm(("g", i))
        for w in range(10):
            a(f"v_dot2c_f32_bf16 {ks[2*w]}, {g.s_sel_lo}, {gat[10*i+w]}")
            a(f"v_dot2c_f32_bf16 {ks[2*w+1]}, {g.s_sel_hi}, {gat[10*i+w]}")
    a(f"s_mul_i32 {st[0]}, {g.s_w}, 5120")
    a(f"s_add_u32 {st[0]}, {st[0]}, {KVX_OFF}")
    a(f"v_lshl_add_u32 {vt[0]}, {vl}, 4, {st[0]}")
    a(f"s_xor_b32 {st[1]}, {g.s_w}, 2")
    a(f"s_mul_i32 {st[1]}, {st[1]}, 5120")
    a(f"s_add_u32 {st[1]}, {st[1]}, {KVX_OFF}")
    a(f"v_lshl_add_u32 {vt[1]}, {vl}, 4, {st[1]}")
    for q in range(5):
        a(f"ds_write_b128 {vt[0]}, {ks.sub(4*q,4)} offset:{1024*q}")
    a("s_waitcnt lgkmcnt(0)")
    a("s_barrier")
    ko = gat.sub(0, 20)
    for q in range(5):
        a(f"ds_read_b128 {ko.sub(4*q,4)}, {vt[1]} offset:{1024*q}")
    a("s_waitcnt lgkmcnt(0)")
    for p in range(10):
        a(f"v_pk_add_f32 {ks.sub(2*p,2)}, {ks.sub(2*p,2)}, {ko.sub(2*p,2)}")
    kvf = V(12, 2)
    for p in range(10):
        a(f"v_cvt_pk_bf16_f32 {kvf[p]}, {ks[2*p]}, {ks[2*p+1]}")
    a(f"v_mov_b32 {kvf[10]}, 0"); a(f"v_mov_b32 {kvf[11]}, 0")
    num = [gat.sub(32, 16), gat.sub(48, 16)]
    for sb in range(2):
        for u in range(3):
            c = "0" if u == 0 else str(num[sb])
            a(f"v_mfma_f32_32x32x16_bf16 {num[sb]}, {kvf.sub(4*u,4)}, {g.phiq[sb].sub(4*u,4)}, {c}")
    v_oa = V(2)
    a(f"v_and_b32 {vt[0]}, 31, {vl}")
    a(f"s_lshl_b32 {st[0]}, {s_wsr}, 6")
    a(f"v_add_u32 {vt[0]}, {st[0]}, {vt[0]}")
    a(f"v_mul_u32_u24 {vt[0]}, 80, {vt[0]}")
    a(f"s_mul_i32 {st[0]}, {s_hw}, 40")
    a(f"s_add_u32 {st[0]}, {st[0]}, {OT_OFF}")
    a(f"v_add_u32 {vt[0]}, {st[0]}, {vt[0]}")
    a(f"v_lshrrev_b32 {vt[1]}, 5, {vl}")
    a(f"v_lshl_add_u32 {v_oa[0]}, {vt[1]}, 3, {vt[0]}")
    a(f"v_lshlrev_b32 {vt[2]}, 3, {vl}")
    a(f"v_add_u32 {vt[2]}, {OTJ_OFF - 32}, {vt[2]}")
    a(f"v_cmp_gt_u32 vcc, 32, {vl}")
    a(f"v_cndmask_b32 {v_oa[1]}, {vt[2]}, {vt[0]}, vcc")
    op = V(6, 2)
    for sb in range(2):
        n = num[sb]
        a(f"v_add_f32 {vt[4]}, {f32hex(1e-6)}, {n[12]}")
        a(f"v_rcp_f32 {vt[4]}, {vt[4]}")
        for p in range(6):
            a(f"v_pk_mul_f32 {n.sub(2*p,2)}, {n.sub(2*p,2)}, {vt.sub(4,2)} op_sel_hi:[1,0]")
        for p in range(6):
            a(f"v_cvt_pk_bf16_f32 {op[p]}, {n[2*p]}, {n[2*p+1]}")
        a(f"ds_write_b64 {v_oa[0]}, {op.sub(0,2)} offset:{sb*32*80}")
        a(f"ds_write_b64 {v_oa[0]}, {op.sub(2,2)} offset:{sb*32*80 + 16}")
        if sb == 0:
            a(f"ds_write_b64 {v_oa[1]}, {op.sub(4,2)} offset:32")
        else:
            a(f"v_add_u32 {vt[5]}, {32*80}, {v_oa[1]}")
            a(f"v_cndmask_b32 {vt[5]}, {v_oa[1]}, {vt[5]}, vcc")
            a(f"ds_write_b64 {vt[5]}, {op.sub(4,2)} offset:32")
    a("s_waitcnt lgkmcnt(0)")
    a("s_barrier")
    od = V(12, 4); v_ra = V(3); v_ga = V(3)
    for ii in range(3):
        a(f"s_add_u32 {st[0]}, {g.s_w}, {4*ii}")
        a(f"s_lshr_b32 {st[1]}, {st[0]}, 1")
        a(f"s_and_b32 {st[2]}, {st[0]}, 1")
        a(f"s_lshl_b32 {st[2]}, {st[2]}, 6")
        a(f"v_add_u32 {vt[0]}, {st[2]}, {vl}")
        a(f"v_mul_u32_u24 {vt[1]}, 80, {vt[0]}")
        a(f"s_lshl_b32 {st[3]}, {st[1]}, 4")
        a(f"s_add_u32 {st[3]}, {st[3]}, {OT_OFF}")
        a(f"v_add_u32 {v_ra[ii]}, {st[3]}, {vt[1]}")
        a(f"s_mul_i32 {st[3]}, {g.s_j}, 5")
        a(f"s_add_u32 {st[3]}, {st[3]}, {st[1]}")
        a(f"s_lshr_b32 {st[4]}, {st[3]}, 2")
        a(f"s_lshl_b32 {st[4]}, {st[4]}, 10")
        a(f"s_and_b32 {st[3]}, {st[3]}, 3")
        a(f"s_lshl_b32 {st[3]}, {st[3]}, 8")
        a(f"s_add_u32 {st[3]}, {st[3]}, {st[4]}")
        a(f"s_mul_i32 {st[4]}, {g.s_rb}, {8*20480}")
        a(f"s_add_u32 {st[3]}, {st[3]}, {st[4]}")
        a(f"s_add_u32 {st[3]}, {st[3]}, {O_OFF}")
        a(f"s_cmp_lt_u32 {st[0]}, 10")
        a(f"s_cselect_b32 {st[3]}, {st[3]}, {OOB:#x}")
        a(f"v_lshrrev_b32 {vt[1]}, 4, {vt[0]}")
        a(f"v_mul_u32_u24 {vt[1]}, 20480, {vt[1]}")
        a(f"v_and_b32 {vt[2]}, 15, {vt[0]}")
        a(f"v_lshl_add_u32 {vt[1]}, {vt[2]}, 4, {vt[1]}")
        a(f"v_add_u32 {v_ga[ii]}, {st[3]}, {vt[1]}")
        a(f"ds_read_b128 {od.sub(4*ii,4)}, {v_ra[ii]}")
    for ii in range(3):
        g.wait(None, 2-ii)
        a(f"buffer_store_dwordx4 {od.sub(4*ii,4)}, {v_ga[ii]}, {g.r_ws}, 0 offen sc1")
    g.drain()
    a("s_barrier")
    g.signal(S2, g.s_rb)
    if g.stop_after not in ("p1", "p2"):
        g.signal(S4B, g.s_j)
    g.stamp("p2_sig")
    V.release(g.mark12)

WROW = 192
WPER = 32*WROW
def wrow_setup(g, swap23):
    a, V = g.a, g.V
    st, vt, vl = g.s_t, g.v_t, g.v_l
    a(f"s_mov_b32 {st[0]}, 0x55555556")
    a(f"s_mul_i32 {st[1]}, {g.s_ct}, 160")
    a(f"s_and_b32 {st[1]}, {st[1]}, 0xffffffc0")
    a(f"v_lshrrev_b32 {vt[5]}, 2, {vl}")
    a(f"v_and_b32 {vt[6]}, 3, {vl}")
    for m in range(6):
        a(f"v_add_u32 {vt[0]}, {16*m}, {vt[5]}")
        a(f"v_mul_hi_u32 {vt[1]}, {vt[0]}, {st[0]}")
        a(f"v_mul_u32_u24 {vt[2]}, 3, {vt[1]}")
        a(f"v_sub_u32 {vt[2]}, {vt[0]}, {vt[2]}")
        a(f"v_bfe_u32 {vt[4]}, {vt[1]}, 2, 1")
        a(f"v_lshlrev_b32 {vt[7]}, 1, {vt[4]}")
        a(f"v_xor_b32 {vt[7]}, {vt[7]}, {vt[6]}")
        if swap23:
            a(f"v_and_b32 {vt[3]}, 0x13, {vt[1]}")
            a(f"v_lshl_or_b32 {vt[3]}, {vt[4]}, 3, {vt[3]}")
            a(f"v_bfe_u32 {vt[4]}, {vt[1]}, 3, 1")
            a(f"v_lshl_or_b32 {vt[1]}, {vt[4]}, 2, {vt[3]}")
        a(f"v_mul_u32_u24 {vt[1]}, 1280, {vt[1]}")
        a(f"v_lshl_add_u32 {vt[1]}, {vt[2]}, 6, {vt[1]}")
        a(f"v_lshl_add_u32 {vt[1]}, {vt[7]}, 4, {vt[1]}")
        a(f"v_add_u32 {g.v_wr[m]}, {st[1]}, {vt[1]}")
        if m % 4: a(f"v_subrev_u32 {g.v_wr[m]}, {1024*(m%4)}, {g.v_wr[m]}")

def wrow_dma(g, srd, period=None, so_line=None, m0_line0=None, m0_line4=None, stride=1):
    out = []
    if period is not None:
        if period == 0:
            first = [f"s_sub_u32 {g.s_wm0}, {g.s_w}, 1", f"s_mul_i32 {g.s_wso}, {g.s_wm0}, {32*1280}", f"s_mul_i32 {g.s_wm0}, {g.s_wm0}, {WPER}"]
        else:
            first = [f"s_add_u32 {g.s_wso}, {g.s_wso}, {stride*32*1280}", f"s_add_u32 {g.s_wm0}, {g.s_wm0}, {stride*WPER}"]
        m0a = [f"s_mov_b32 m0, {g.s_wm0}"]; m0b = [f"s_add_u32 m0, {g.s_wm0}, 4096"]
    else:
        first = so_line; m0a = m0_line0; m0b = m0_line4
    for m in range(6):
        grp = []
        if m == 0: grp += first + m0a
        if m == 4: grp += m0b
        off = f" offset:{1024*(m%4)}" if m % 4 else ""
        grp.append(f"buffer_load_dwordx4 {g.v_wr[m]}, {srd}, {g.s_wso} offen{off} lds")
        out.append(grp)
    return out

def trw_base(g, dst2, extra_s=None):
    a, st, vt, vl = g.a, g.s_t, g.v_t, g.v_l
    a(f"v_lshrrev_b32 {vt[0]}, 5, {vl}")
    a(f"v_lshlrev_b32 {vt[0]}, 4, {vt[0]}")
    a(f"v_bfe_u32 {vt[2]}, {vl}, 4, 1")
    a(f"v_lshl_add_u32 {vt[0]}, {vt[2]}, 2, {vt[0]}")
    a(f"v_bfe_u32 {vt[1]}, {vl}, 2, 2")
    a(f"v_add_u32 {vt[0]}, {vt[0]}, {vt[1]}")
    a(f"v_mul_u32_u24 {vt[0]}, {WROW}, {vt[0]}")
    a(f"v_and_b32 {vt[1]}, 3, {vl}")
    a(f"v_lshl_add_u32 {vt[0]}, {vt[1]}, 3, {vt[0]}")
    a(f"s_and_b32 {st[5]}, {g.s_ct}, 1")
    a(f"s_lshl_b32 {st[6]}, {st[5]}, 5")
    if extra_s is not None: a(f"s_add_u32 {st[6]}, {st[6]}, {extra_s}")
    a(f"v_add_u32 {vt[0]}, {st[6]}, {vt[0]}")
    a(f"v_lshlrev_b32 {vt[2]}, 5, {vt[2]}")
    a(f"v_add_u32 {vt[3]}, {vt[0]}, {vt[2]}")
    a(f"v_sub_u32 {vt[4]}, {vt[0]}, {vt[2]}")
    a(f"s_cmp_eq_u32 {st[5]}, 0")
    a(f"s_cselect_b64 vcc, -1, 0")
    a(f"v_cndmask_b32 {dst2[0]}, {vt[4]}, {vt[3]}, vcc")
    a(f"v_cndmask_b32 {dst2[1]}, {vt[3]}, {vt[4]}, vcc")

def pair_store(g, src10, tmp4, addr3, srd, flags):
    a = g.a
    for i, (na, nb) in enumerate(((0, 1), (2, 3), (4, 4))):
        t = tmp4[i]
        a(f"v_mov_b32 {t[0]}, {src10[2*na]}")
        a(f"v_mov_b32 {t[1]}, {src10[2*na+1]}")
        a(f"v_mov_b32 {t[2]}, {src10[2*nb]}")
        a(f"v_mov_b32 {t[3]}, {src10[2*nb+1]}")
    for i in range(3):
        t = tmp4[i]
        a(f"v_permlane16_swap_b32 {t[0]}, {t[2]}")
        a(f"v_permlane16_swap_b32 {t[1]}, {t[3]}")
    for i in range(3):
        a(f"buffer_store_dwordx4 {tmp4[i]}, {addr3[i]}, {srd}, 0 offen{flags}")

def p3(g):
    a, S, V, A = g.a, g.S, g.V, g.A
    st, vt, vl = g.s_t, g.v_t, g.v_l
    g.hp = V(10, 2)
    mark = V.mark(); amark = A.mark()
    xr = g.xr
    v_row = V()
    a(f"s_lshl_b32 {st[0]}, {g.s_rb64}, 2")
    a(f"s_add_u32 {st[0]}, {st[0]}, {g.s_w}")
    a(f"s_lshl_b32 {st[1]}, {st[0]}, 4")
    a(f"v_and_b32 {vt[0]}, 15, {vl}")
    a(f"v_add_u32 {v_row}, {st[1]}, {vt[0]}")
    v_ab = [V(2), V(2)]
    trw_base(g, v_ab[0])
    for i in range(2): a(f"v_add_u32 {v_ab[1][i]}, {10*WPER}, {v_ab[0][i]}")
    v_of = V()
    a(f"s_lshl_b32 {st[0]}, {g.s_rb64}, 2")
    a(f"s_add_u32 {st[0]}, {st[0]}, {g.s_w}")
    a(f"s_mul_i32 {st[0]}, {st[0]}, 20480")
    a(f"s_add_u32 {st[0]}, {st[0]}, {O_OFF}")
    a(f"v_lshl_add_u32 {v_of}, {vl}, 4, {st[0]}")
    acc = V(20, 4); wf = [V(20, 2) for _ in range(3)]
    of = A(80, 4)
    for i in range(20): a(f"v_mov_b32 {acc[i]}, 0")
    g.poll(S2, g.s_rb)
    g.stamp("s2_done")
    for kb in range(20):
        if kb % 4 == 0: a(f"s_mov_b32 {g.s_so}, {1024*kb}")
        a(f"buffer_load_dwordx4 {of.sub(4*kb,4)}, {v_of}, {g.r_ws}, {g.s_so} offen offset:{1024*(kb%4)} sc1")
        g.vm.add(("o", kb))
    def reads(t):
        bases = v_ab[0] if t < 10 else v_ab[1]
        out = []
        for nb in range(5):
            for th in range(2):
                out.append(f"ds_read_b64_tr_b16 {wf[t%3].sub(4*nb+2*th,2)}, {bases[nb&1]} offset:{(32*(t%10)+8*th)*WROW + 32*nb}")
        return out
    for l in reads(0) + reads(1): a(l)
    for t in range(20):
        rd = reads(t+2) if t + 2 < 20 else []
        g.wait(g.vm.wait(("o", t)), 10 if t + 1 < 20 else 0)
        for nb in range(5):
            a(f"v_mfma_f32_16x16x32_bf16 {acc.sub(4*nb,4)}, {wf[t%3].sub(4*nb,4)}, {of.sub(4*t,4)}, {acc.sub(4*nb,4)}")
            for l in rd[2*nb:2*nb+2]: a(l)
    g.stamp("p3_loop")
    a("s_barrier")
    xf = wf[0]
    for i in range(10):
        a(f"v_lshlrev_b32 {xf[2*i]}, 16, {xr[i]}")
        a(f"v_and_b32 {xf[2*i+1]}, 0xffff0000, {xr[i]}")
    for i in range(10):
        a(f"v_pk_add_f32 {acc.sub(2*i,2)}, {acc.sub(2*i,2)}, {xf.sub(2*i,2)}")
    for i in range(10):
        a(f"v_cvt_pk_bf16_f32 {g.hp[i]}, {acc[2*i]}, {acc[2*i+1]}")
    tmp4 = [wf[1].sub(0,4), wf[1].sub(4,4), wf[1].sub(8,4)]
    ad = wf[2].sub(0, 3)
    a(f"s_lshl_b32 {st[0]}, {g.s_rb64}, 2")
    a(f"s_add_u32 {st[0]}, {st[0]}, {g.s_w}")
    a(f"s_lshr_b32 {st[1]}, {st[0]}, 1")
    a(f"s_mul_i32 {st[1]}, {st[1]}, 40")
    a(f"s_mul_i32 {st[2]}, {g.s_ct}, 5")
    a(f"s_add_u32 {st[1]}, {st[1]}, {st[2]}")
    a(f"s_lshl_b32 {st[1]}, {st[1]}, 10")
    a(f"s_and_b32 {st[2]}, {g.s_w}, 1")
    a(f"s_lshl_b32 {st[2]}, {st[2]}, 8")
    a(f"s_add_u32 {st[1]}, {st[1]}, {st[2]}")
    a(f"s_add_u32 {st[1]}, {st[1]}, {H_OFF}")
    a(f"v_bfe_u32 {vt[0]}, {vl}, 4, 1")
    a(f"v_lshlrev_b32 {vt[0]}, 10, {vt[0]}")
    a(f"v_lshrrev_b32 {vt[1]}, 5, {vl}")
    a(f"v_lshl_add_u32 {vt[0]}, {vt[1]}, 9, {vt[0]}")
    a(f"v_and_b32 {vt[1]}, 15, {vl}")
    a(f"v_lshl_add_u32 {vt[0]}, {vt[1]}, 4, {vt[0]}")
    a(f"v_add_u32 {ad[0]}, {st[1]}, {vt[0]}")
    a(f"v_add_u32 {ad[1]}, 2048, {ad[0]}")
    a(f"v_add_u32 {ad[2]}, 4096, {ad[0]}")
    a(f"v_bfe_u32 {vt[2]}, {vl}, 4, 1")
    a(f"v_cmp_eq_u32 vcc, 0, {vt[2]}")
    a(f"v_mov_b32 {vt[3]}, {OOB:#x}")
    a(f"v_cndmask_b32 {ad[2]}, {vt[3]}, {ad[2]}, vcc")
    pair_store(g, g.hp, tmp4, ad, g.r_ws, " sc1")
    sq = xf.sub(0, 4)
    s_ones = st[4]
    a(f"s_mov_b32 {s_ones}, {ONES2:#x}")
    for i in range(4): a(f"v_mov_b32 {sq[i]}, 0")
    for i in range(10):
        a(f"v_dot2c_f32_bf16 {sq[i%2]}, {s_ones}, {g.hp[i]}")
        a(f"v_dot2c_f32_bf16 {sq[2+i%2]}, {g.hp[i]}, {g.hp[i]}")
    a(f"v_add_f32 {sq[0]}, {sq[0]}, {sq[1]}")
    a(f"v_add_f32 {sq[2]}, {sq[2]}, {sq[3]}")
    a(f"v_permlane32_swap_b32 {sq[0]}, {sq[2]}")
    a(f"v_add_f32 {sq[0]}, {sq[0]}, {sq[2]}")
    a(f"v_mov_b32 {sq[1]}, {sq[0]}")
    a(f"v_permlane16_swap_b32 {sq[0]}, {sq[1]}")
    a(f"v_add_f32 {sq[0]}, {sq[0]}, {sq[1]}")
    a(f"v_lshlrev_b32 {vt[0]}, 6, {v_row}")
    a(f"s_lshl_b32 {st[0]}, {g.s_ct}, 3")
    a(f"s_add_u32 {st[0]}, {st[0]}, {HST_OFF}")
    a(f"v_add_u32 {vt[0]}, {st[0]}, {vt[0]}")
    a(f"v_lshrrev_b32 {vt[1]}, 5, {vl}")
    a(f"v_lshl_add_u32 {vt[0]}, {vt[1]}, 2, {vt[0]}")
    a(f"v_cndmask_b32 {vt[0]}, {vt[3]}, {vt[0]}, vcc")
    a(f"buffer_store_dword {sq[0]}, {vt[0]}, {g.r_ws}, 0 offen sc1")
    g.drain()
    a("s_barrier")
    g.signal(S3, g.s_rb)
    g.stamp("p3_sig")
    V.release(mark); A.release(amark); V.limit = 256

P4_NS = 6
CSX_OFF = 147456
CSF_OFF = CSX_OFF + 4096
def p4(g):
    a, S, V, A = g.a, g.S, g.V, g.A
    st, vt, vl = g.s_t, g.v_t, g.v_l
    mark = V.mark(); amark = A.mark()
    NS = P4_NS
    v_dg = V(3); v_du = V(3); v_d0 = V(2)
    s_m0 = S(); s_m00 = S()
    a(f"s_mov_b32 {st[2]}, 0x15555556")
    a(f"s_mul_i32 {st[1]}, {g.s_j}, 192")
    def piece(dg, du, t_s, const, comp):
        a(f"v_add_u32 {vt[0]}, {t_s}, {vl}")
        if const: a(f"v_add_u32 {vt[0]}, {const}, {vt[0]}")
        a(f"v_mul_hi_u32 {vt[1]}, {vt[0]}, {st[2]}")
        a(f"v_mul_u32_u24 {vt[2]}, 12, {vt[1]}")
        a(f"v_sub_u32 {vt[2]}, {vt[0]}, {vt[2]}")
        a(f"v_mul_u32_u24 {vt[1]}, 3072, {vt[1]}")
        a(f"v_add_u32 {vt[1]}, {st[1]}, {vt[1]}")
        a(f"v_lshl_add_u32 {dg}, {vt[2]}, 4, {vt[1]}")
        a(f"v_xor_b32 {vt[3]}, 2, {vt[2]}")
        a(f"v_lshl_add_u32 {du}, {vt[3]}, 4, {vt[1]}")
        if comp:
            a(f"v_subrev_u32 {dg}, {comp}, {dg}")
            a(f"v_subrev_u32 {du}, {comp}, {du}")
    a(f"s_mul_i32 {st[0]}, {g.s_w}, 192")
    for j in range(3): piece(v_dg[j], v_du[j], st[0], 64*j, 1024*j)
    a(f"s_sub_u32 {st[3]}, {g.s_w}, 1")
    a(f"s_max_i32 {st[3]}, {st[3]}, 0")
    a(f"s_lshl_b32 {st[0]}, {st[3]}, 6")
    piece(v_d0[0], v_d0[1], st[0], 0, 0)
    a(f"s_lshl_b32 {s_m00}, {st[3]}, 10")
    a(f"s_mul_i32 {s_m0}, {g.s_w}, 3072")
    def dma_stage(stg):
        slot = stg % NS
        L = [[f"s_mov_b32 {g.s_so2}, {stg*64*3072}", f"s_add_u32 m0, {s_m0}, {slot*24576}",
              f"buffer_load_dwordx4 {v_dg[0]}, {g.r_wg}, {g.s_so2} offen lds"]]
        for j in (1, 2): L.append([f"buffer_load_dwordx4 {v_dg[j]}, {g.r_wg}, {g.s_so2} offen offset:{1024*j} lds"])
        L.append([f"s_add_u32 m0, {s_m0}, {slot*24576+12288}", f"buffer_load_dwordx4 {v_du[0]}, {g.r_wu}, {g.s_so2} offen lds"])
        for j in (1, 2): L.append([f"buffer_load_dwordx4 {v_du[j]}, {g.r_wu}, {g.s_so2} offen offset:{1024*j} lds"])
        return L
    NPRE = g.opt.get("p4pre", 4)
    if g.opt.get("p4rep"):
        s_rep = S()
        a(f"s_mov_b32 {s_rep}, 0")
        a.label("L_p4rep")
        g.stamp("p4rep")
    Lnp = a.newlabel("p4np")
    a(f"s_cmp_eq_u32 {g.s_w}, 0")
    a(f"s_cbranch_scc1 {Lnp}")
    for stg in range(NPRE):
        for grp in dma_stage(stg):
            for l in grp: a(l)
        a(f"s_add_u32 m0, {s_m00}, {(stg % NS)*24576}")
        a("s_nop 0")
        a(f"buffer_load_dwordx4 {v_d0[0]}, {g.r_wg}, {g.s_so2} offen lds")
        a(f"s_add_u32 m0, {s_m00}, {(stg % NS)*24576 + 12288}")
        a("s_nop 0")
        a(f"buffer_load_dwordx4 {v_d0[1]}, {g.r_wu}, {g.s_so2} offen lds")
    a.label(Lnp)
    v_be = V(2); v_bo = V(2)
    a(f"v_lshrrev_b32 {vt[0]}, 4, {vl}")
    a(f"v_and_b32 {vt[1]}, 1, {vt[0]}")
    a(f"v_lshrrev_b32 {vt[0]}, 1, {vt[0]}")
    a(f"v_lshlrev_b32 {vt[0]}, 3, {vt[0]}")
    a(f"v_bfe_u32 {vt[2]}, {vl}, 2, 2")
    a(f"v_add_u32 {vt[0]}, {vt[0]}, {vt[2]}")
    a(f"v_mul_u32_u24 {vt[0]}, 192, {vt[0]}")
    a(f"v_and_b32 {vt[2]}, 3, {vl}")
    a(f"v_lshl_add_u32 {vt[0]}, {vt[2]}, 3, {vt[0]}")
    a(f"v_mul_u32_u24 {vt[2]}, 12288, {vt[1]}")
    a(f"v_add_u32 {vt[0]}, {vt[0]}, {vt[2]}")
    a(f"v_lshlrev_b32 {vt[1]}, 5, {vt[1]}")
    a(f"v_add_u32 {v_be[0]}, {vt[0]}, {vt[1]}")
    a(f"v_sub_u32 {v_bo[0]}, {vt[0]}, {vt[1]}")
    a(f"v_add_u32 {v_be[1]}, {3*24576}, {v_be[0]}")
    a(f"v_add_u32 {v_bo[1]}, {3*24576}, {v_bo[0]}")
    v_h = V()
    a(f"s_lshl_b32 {st[0]}, {g.s_rb}, 2")
    a(f"s_add_u32 {st[0]}, {st[0]}, {g.s_w}")
    a(f"s_mul_i32 {st[0]}, {st[0]}, 40960")
    a(f"s_add_u32 {st[0]}, {st[0]}, {H_OFF}")
    a(f"v_lshl_add_u32 {v_h}, {vl}, 4, {st[0]}")
    csp = V(16, 4); v_csa = V(); hs = V(8, 4); v_hs = V()
    a(f"s_lshl_b32 {st[0]}, {g.s_j}, 4")
    a(f"s_lshl_b32 {st[1]}, {g.s_w}, 2")
    a(f"s_add_u32 {st[0]}, {st[0]}, {st[1]}")
    a(f"s_lshl_b32 {st[0]}, {st[0]}, 10")
    a(f"s_add_u32 {st[0]}, {st[0]}, {CSGU_OFF}")
    a(f"v_lshl_add_u32 {v_csa}, {vl}, 4, {st[0]}")
    a(f"s_lshl_b32 {st[0]}, {g.s_rb}, 7")
    a(f"s_lshl_b32 {st[1]}, {g.s_w}, 5")
    a(f"s_add_u32 {st[0]}, {st[0]}, {st[1]}")
    a(f"v_and_b32 {vt[0]}, 31, {vl}")
    a(f"v_add_u32 {vt[0]}, {st[0]}, {vt[0]}")
    a(f"v_lshlrev_b32 {vt[0]}, 6, {vt[0]}")
    a(f"v_lshrrev_b32 {vt[1]}, 5, {vl}")
    a(f"v_lshl_add_u32 {vt[0]}, {vt[1]}, 5, {vt[0]}")
    a(f"v_add_u32 {v_hs}, {HST_OFF}, {vt[0]}")
    acc = V(96, 4); wf = [V(24, 2), V(24, 2)]
    hf = A(160, 4)
    for i in range(96): a(f"v_mov_b32 {acc[i]}, 0")
    g.vm.drain()
    g.poll(S3, g.s_rb, also=(S4B, g.s_j))
    g.stamp("s3_done")
    PD0 = g.opt.get("p4pd", 8)
    def hload(t):
        L = []
        if t % 4 == 0: L.append(f"s_mov_b32 {g.s_so}, {1024*t}")
        L.append(f"buffer_load_dwordx4 {hf.sub(4*t,4)}, {v_h}, {g.r_ws}, {g.s_so} offen offset:{1024*(t%4)} sc1")
        return L
    for t in range(PD0):
        for l in hload(t): a(l)
        g.vm.add(("h", t))
    g.wait(PD0)
    a("s_barrier")
    def reads(t):
        stg, u = t >> 2, t & 3; slot = stg % NS
        grp, sl = slot // 3, slot % 3
        out = []
        for b in range(6):
            base = v_be[grp] if b % 2 == 0 else v_bo[grp]
            for th in range(2):
                out.append(f"ds_read_b64_tr_b16 {wf[t&1].sub(4*b+2*th,2)}, {base} offset:{sl*24576 + (16*u+4*th)*192 + 32*b}")
        return out
    for l in reads(0): a(l)
    pend = []
    nxt_h = PD0
    hq = [(hload(t), ("h", t)) for t in range(PD0, 40)]
    if g.opt.get("p4noh"): hq = []
    misc = [([f"buffer_load_dwordx4 {csp.sub(4*i,4)}, {v_csa}, {g.r_ws}, 0 offen offset:{1024*i} sc1"], "csp") for i in range(4)]
    misc += [([f"buffer_load_dwordx4 {hs.sub(0,4)}, {v_hs}, {g.r_ws}, 0 offen sc1"], "hs"),
             ([f"buffer_load_dwordx4 {hs.sub(4,4)}, {v_hs}, {g.r_ws}, 0 offen offset:16 sc1"], "hs")]
    for stg in range(NPRE, NS): pend += [(grp, ("d", stg)) for grp in dma_stage(stg)]
    if g.opt.get("p4nod"): pend = []
    for t in range(40):
        stg, u = t >> 2, t & 3
        if t in (8, 16, 24, 32): g.stamp(f"p4_t{t}")
        tags = [("h", t)]
        bar = (u == 1 and stg + 1 < 10)
        if bar: tags.append(("d", stg+1))
        vmn = g.vm.wait(*tags)
        rd = reads(t+1) if t + 1 < 40 else []
        if bar and stg >= 1 and stg - 1 + NS < 10 and not g.opt.get("p4nod"):
            pend += [(grp, ("d", stg-1+NS)) for grp in dma_stage(stg-1+NS)]
        for b in range(6):
            lg = None
            if b % 2 == 0:
                lg = 2*(6-b-2) + (2*b if t + 1 < 40 else 0)
            g.wait(vmn if b == 0 else None, lg)
            if b == 0 and bar: a("s_barrier")
            a(f"v_mfma_f32_32x32x16_bf16 {acc.sub(16*b,16)}, {wf[t&1].sub(4*b,4)}, {hf.sub(4*t,4)}, {acc.sub(16*b,16)}")
            for l in rd[2*b:2*b+2]: a(l)
            item = None
            if b == 0 and hq: item = hq.pop(0)
            elif b == 2 and pend: item = pend.pop(0)
            elif b == 4 and pend and (t % 2 == 0 or len(pend) > 9): item = pend.pop(0)
            elif b == 4 and misc and t >= 2: item = misc.pop(0)
            if item:
                for l in item[0]: a(l)
                g.vm.add(item[1])
        if t == 20:
            g.waitvm("csp")
            for i in range(1, 4):
                for p in range(2):
                    a(f"v_pk_add_f32 {csp.sub(2*p,2)}, {csp.sub(2*p,2)}, {csp.sub(4*i+2*p,2)}")
            a(f"s_lshl_b32 {st[0]}, {g.s_w}, 10")
            a(f"s_add_u32 {st[0]}, {st[0]}, {CSX_OFF}")
            a(f"v_lshl_add_u32 {vt[0]}, {vl}, 4, {st[0]}")
            a(f"ds_write_b128 {vt[0]}, {csp.sub(0,4)}")
        if t == 26:
            a(f"v_lshlrev_b32 {vt[0]}, 4, {vl}")
            a(f"v_add_u32 {vt[0]}, {CSX_OFF}, {vt[0]}")
            for i in range(4): a(f"ds_read_b128 {csp.sub(4*i,4)}, {vt[0]} offset:{1024*i}")
            a("s_waitcnt lgkmcnt(0)")
            for i in range(1, 4):
                for p in range(2):
                    a(f"v_pk_add_f32 {csp.sub(2*p,2)}, {csp.sub(2*p,2)}, {csp.sub(4*i+2*p,2)}")
            a(f"s_lshl_b32 {st[0]}, {g.s_w}, 10")
            a(f"s_add_u32 {st[0]}, {st[0]}, {CSF_OFF}")
            a(f"v_lshl_add_u32 {vt[0]}, {vl}, 4, {st[0]}")
            a(f"ds_write_b128 {vt[0]}, {csp.sub(0,4)}")
        if t == 35 and not g.opt.get("notouch3"):
            touch_wave(g, g.r_wd, 1280, 48, 5, 640, 0x33333334)
    assert not pend and not hq and not misc
    g.stamp("p4_loop")
    if g.opt.get("p4rep"):
        lr = a.newlabel("repd")
        a(f"s_cmp_eq_u32 {s_rep}, 0")
        a(f"s_cbranch_scc0 {lr}")
        a(f"s_mov_b32 {s_rep}, 1")
        a("s_waitcnt vmcnt(0) lgkmcnt(0)")
        a("s_barrier")
        a("s_branch L_p4rep")
        a.label(lr)
    g.waitvm("hs")
    for p in (1, 2, 3):
        a(f"v_pk_add_f32 {hs.sub(0,2)}, {hs.sub(0,2)}, {hs.sub(2*p,2)}")
    a(f"v_mov_b32 {hs[2]}, {hs[0]}"); a(f"v_mov_b32 {hs[3]}, {hs[1]}")
    a(f"v_permlane32_swap_b32 {hs[0]}, {hs[2]}")
    a(f"v_permlane32_swap_b32 {hs[1]}, {hs[3]}")
    a(f"v_pk_add_f32 {hs.sub(0,2)}, {hs.sub(0,2)}, {hs.sub(2,2)}")
    nm = hs.sub(4, 2); r2 = hs.sub(6, 2)
    a(f"v_mul_f32 {nm[0]}, {f32hex(-1/640)}, {hs[0]}")
    a(f"v_mul_f32 {hs[1]}, {f32hex(1/640)}, {hs[1]}")
    a(f"v_fma_f32 {hs[1]}, -{nm[0]}, {nm[0]}, {hs[1]}")
    a(f"v_max_f32 {hs[1]}, 0, {hs[1]}")
    a(f"v_add_f32 {hs[1]}, {f32hex(1e-5)}, {hs[1]}")
    a(f"v_rcp_f32 {r2[0]}, {hs[1]}")
    v_cs = V(); v_ao = V()
    a(f"s_lshl_b32 {st[0]}, {g.s_w}, 10")
    a(f"s_add_u32 {st[0]}, {st[0]}, {CSF_OFF}")
    a(f"v_lshrrev_b32 {vt[0]}, 5, {vl}")
    a(f"v_lshl_add_u32 {v_cs}, {vt[0]}, 4, {st[0]}")
    a(f"s_lshl_b32 {st[0]}, {g.s_rb}, 3")
    a(f"s_lshl_b32 {st[1]}, {g.s_w}, 1")
    a(f"s_add_u32 {st[0]}, {st[0]}, {st[1]}")
    a(f"s_mul_i32 {st[0]}, {st[0]}, {48*1024}")
    a(f"s_mul_i32 {st[1]}, {g.s_j}, 3072")
    a(f"s_add_u32 {st[0]}, {st[0]}, {st[1]}")
    a(f"s_add_u32 {st[0]}, {st[0]}, {ACT_OFF}")
    a(f"v_bfe_u32 {vt[1]}, {vl}, 4, 1")
    a(f"v_mul_u32_u24 {vt[1]}, {48*1024}, {vt[1]}")
    a(f"v_lshl_add_u32 {vt[1]}, {vt[0]}, 8, {vt[1]}")
    a(f"v_and_b32 {vt[2]}, 15, {vl}")
    a(f"v_lshl_add_u32 {vt[1]}, {vt[2]}, 4, {vt[1]}")
    a(f"v_add_u32 {v_ao}, {st[0]}, {vt[1]}")
    cb = [wf[0].sub(0, 16), wf[1].sub(0, 16)]
    ob = [wf[0].sub(16, 4), wf[1].sub(16, 4)]
    def csreads(b):
        d = cb[b & 1]
        for q in range(2):
            a(f"ds_read_b128 {d.sub(4*q,4)}, {v_cs} offset:{64*b + 32*q}")
            a(f"ds_read_b128 {d.sub(8+4*q,4)}, {v_cs} offset:{512 + 64*b + 32*q}")
    csreads(0)
    for b in range(6):
        if b + 1 < 6: csreads(b+1)
        g.wait(None, 4 if b + 1 < 6 else 0)
        c = cb[b & 1]; X = acc.sub(16*b, 16); o = ob[b & 1]
        for p in range(8):
            a(f"v_pk_fma_f32 {X.sub(2*p,2)}, {c.sub(2*p,2)}, {nm}, {X.sub(2*p,2)} op_sel_hi:[1,0,1]")
        for e in range(8): a(f"v_max_f32 {X[e]}, 0, {X[e]}")
        for p in range(4):
            a(f"v_pk_mul_f32 {X.sub(8+2*p,2)}, {X.sub(8+2*p,2)}, {r2} op_sel_hi:[1,0]")
        for p in range(4):
            a(f"v_pk_mul_f32 {X.sub(2*p,2)}, {X.sub(2*p,2)}, {X.sub(8+2*p,2)}")
        for p in range(4):
            a(f"v_cvt_pk_bf16_f32 {o[p]}, {X[2*p]}, {X[2*p+1]}")
        a(f"buffer_store_dwordx4 {o}, {v_ao}, {g.r_ws}, 0 offen offset:{1024*(b>>1) + 512*(b&1)} sc1")
    g.drain()
    a("s_barrier")
    g.signal(S4, g.s_rb)
    g.stamp("p4_sig")
    V.release(mark); A.release(amark)

P5_NS = 6
P5_SLOT = 4*WPER
XCH_OFF = 0
def p5(g):
    a, S, V, A = g.a, g.S, g.V, g.A
    st, vt, vl = g.s_t, g.v_t, g.v_l
    mark = V.mark(); amark = A.mark()
    NS = P5_NS
    s_kh = S(); s_sh = S(); s_p2 = S(); s_m0 = S(); s_sob = S()
    a(f"s_and_b32 {s_kh}, {g.s_w}, 1")
    a(f"s_lshr_b32 {s_sh}, {g.s_w}, 1")
    wrow_setup(g, swap23=False)
    a(f"s_mul_i32 {s_m0}, {s_kh}, {2*WPER}")
    a(f"s_mul_i32 {st[0]}, {s_sh}, {WPER}")
    a(f"s_add_u32 {s_m0}, {s_m0}, {st[0]}")
    a(f"s_mul_i32 {s_sob}, {s_kh}, {768*1280}")
    a(f"s_mul_i32 {st[0]}, {s_sh}, {32*1280}")
    a(f"s_add_u32 {s_sob}, {s_sob}, {st[0]}")
    def dma_stage(stg):
        slot = stg % NS
        return wrow_dma(g, g.r_wd,
                        so_line=[f"s_add_u32 {g.s_wso}, {s_sob}, {stg*64*1280}"],
                        m0_line0=[f"s_add_u32 m0, {s_m0}, {slot*P5_SLOT}"],
                        m0_line4=[f"s_add_u32 m0, {s_m0}, {slot*P5_SLOT + 4096}"])
    NPRE = g.opt.get("p5pre", 4)
    Lnp = a.newlabel("p5np")
    a(f"s_cmp_eq_u32 {g.s_w}, 0")
    a(f"s_cbranch_scc1 {Lnp}")
    for stg in range(NPRE):
        for grp in dma_stage(stg):
            for l in grp: a(l)
    for wv in (1, 2, 3):
        lx = a.newlabel("p5x")
        a(f"s_cmp_eq_u32 {g.s_w}, {wv}")
        a(f"s_cbranch_scc0 {lx}")
        for stg in range(NPRE):
            a(f"s_mov_b32 {g.s_wso}, {stg*64*1280}")
            for m in (2*(wv-1), 2*(wv-1)+1):
                base = (stg % NS)*P5_SLOT + (4096 if m >= 4 else 0)
                a(f"s_mov_b32 m0, {base}")
                a("s_nop 0")
                off = f" offset:{1024*(m%4)}" if m % 4 else ""
                a(f"buffer_load_dwordx4 {g.v_wr[m]}, {g.r_wd}, {g.s_wso} offen{off} lds")
        a.label(lx)
    a.label(Lnp)
    v_ab = [V(2), V(2)]
    a(f"s_mul_i32 {st[0]}, {s_kh}, {2*WPER}")
    trw_base(g, v_ab[0], st[0])
    for i in range(2): a(f"v_add_u32 {v_ab[1][i]}, {3*P5_SLOT}, {v_ab[0][i]}")
    v_af = V(2)
    a(f"s_lshl_b32 {st[0]}, {g.s_rb64}, 2")
    a(f"s_lshl_b32 {st[1]}, {s_sh}, 1")
    a(f"s_add_u32 {st[0]}, {st[0]}, {st[1]}")
    a(f"s_mul_i32 {st[0]}, {st[0]}, 48")
    a(f"s_mul_i32 {st[1]}, {s_kh}, 24")
    a(f"s_add_u32 {st[0]}, {st[0]}, {st[1]}")
    a(f"s_lshl_b32 {st[0]}, {st[0]}, 10")
    a(f"s_add_u32 {st[0]}, {st[0]}, {ACT_OFF}")
    a(f"v_lshl_add_u32 {v_af[0]}, {vl}, 4, {st[0]}")
    a(f"v_add_u32 {v_af[1]}, {48*1024}, {v_af[0]}")
    acc = V(40, 4); wf = [V(20, 2), V(20, 2)]
    RING = 24
    af = A(8*RING, 4)
    for i in range(40): a(f"v_mov_b32 {acc[i]}, 0")
    g.vm.drain()
    g.poll(S4, g.s_rb)
    g.stamp("s4_done")
    def aload(t):
        L = []
        if t % 4 == 0: L.append(f"s_mov_b32 {g.s_so}, {1024*t}")
        for sb in range(2):
            L.append(f"buffer_load_dwordx4 {af.sub(8*(t%RING)+4*sb,4)}, {v_af[sb]}, {g.r_ws}, {g.s_so} offen offset:{1024*(t%4)} sc1")
        return L
    PD = g.opt.get("p5pd", 8)
    for t in range(PD):
        for l in aload(t): a(l)
        g.vm.add(("a", t), 2)
    g.wait(2*PD)
    a("s_barrier")
    def reads(t):
        stg, p2 = t >> 1, t & 1; slot = stg % NS
        bases = v_ab[slot // 3]; sl = slot % 3
        return [f"ds_read_b64_tr_b16 {wf[t&1].sub(4*nb+2*th,2)}, {bases[nb&1]} offset:{sl*P5_SLOT + (32*p2+8*th)*WROW + 32*nb}"
                for nb in range(5) for th in range(2)]
    for l in reads(0): a(l)
    pend = []
    for stg in range(NPRE, NS): pend += [(grp, ("d", stg)) for grp in dma_stage(stg)]
    for t in range(24):
        stg, u = t >> 1, t & 1
        tags = [("a", t)]
        bar = (u == 0 and stg + 1 < 12)
        if bar: tags.append(("d", stg+1))
        vmn = g.vm.wait(*tags)
        rd = reads(t+1) if t + 1 < 24 else []
        if bar and stg >= 1 and stg - 1 + NS < 12:
            pend += [(grp, ("d", stg-1+NS)) for grp in dma_stage(stg-1+NS)]
        k = 0
        for nb in range(5):
            lg = 2*(4-nb) + (2*nb if t + 1 < 24 else 0)
            g.wait(vmn if nb == 0 else None, lg)
            if nb == 0 and bar: a("s_barrier")
            for sb in range(2):
                X = acc.sub(20*sb+4*nb, 4)
                a(f"v_mfma_f32_16x16x32_bf16 {X}, {wf[t&1].sub(4*nb,4)}, {af.sub(8*(t%RING)+4*sb,4)}, {X}")
                if rd: a(rd[2*nb+sb])
            if nb == 1 and t + PD < 24:
                for l in aload(t+PD): a(l)
                g.vm.add(("a", t+PD), 2)
            if pend and nb in (0, 2, 3, 4):
                grp, tag = pend.pop(0)
                for l in grp: a(l)
                g.vm.add(tag)
    assert not pend
    g.stamp("p5_loop")
    a("s_barrier")
    a(f"s_mul_i32 {st[0]}, {g.s_w}, 5120")
    a(f"v_lshl_add_u32 {vt[0]}, {vl}, 4, {st[0]}")
    a(f"s_xor_b32 {st[1]}, {g.s_w}, 1")
    a(f"s_mul_i32 {st[1]}, {st[1]}, 5120")
    a(f"v_lshl_add_u32 {vt[1]}, {vl}, 4, {st[1]}")
    lk = a.newlabel("x1"); le = a.newlabel("xe")
    fin = wf[0]; oth = wf[1]
    a(f"s_cmp_eq_u32 {s_kh}, 0")
    a(f"s_cbranch_scc0 {lk}")
    for q in range(5): a(f"ds_write_b128 {vt[0]}, {acc.sub(20+4*q,4)} offset:{1024*q}")
    for i in range(20): a(f"v_mov_b32 {fin[i]}, {acc[i]}")
    a(f"s_branch {le}")
    a.label(lk)
    for q in range(5): a(f"ds_write_b128 {vt[0]}, {acc.sub(4*q,4)} offset:{1024*q}")
    for i in range(20): a(f"v_mov_b32 {fin[i]}, {acc[20+i]}")
    a.label(le)
    a("s_waitcnt lgkmcnt(0)")
    a("s_barrier")
    for q in range(5): a(f"ds_read_b128 {oth.sub(4*q,4)}, {vt[1]} offset:{1024*q}")
    xf = acc.sub(0, 20)
    for i in range(10):
        a(f"v_lshlrev_b32 {xf[2*i]}, 16, {g.hp[i]}")
        a(f"v_and_b32 {xf[2*i+1]}, 0xffff0000, {g.hp[i]}")
    for i in range(10):
        a(f"v_pk_add_f32 {fin.sub(2*i,2)}, {fin.sub(2*i,2)}, {xf.sub(2*i,2)}")
    a("s_waitcnt lgkmcnt(0)")
    for i in range(10):
        a(f"v_pk_add_f32 {fin.sub(2*i,2)}, {fin.sub(2*i,2)}, {oth.sub(2*i,2)}")
    op = acc.sub(20, 10)
    for i in range(10):
        a(f"v_cvt_pk_bf16_f32 {op[i]}, {fin[2*i]}, {fin[2*i+1]}")
    tmp4 = [acc.sub(0,4), acc.sub(4,4), acc.sub(8,4)]
    ad = oth.sub(0, 3)
    a(f"s_lshl_b32 {st[0]}, {g.s_rb64}, 2")
    a(f"s_add_u32 {st[0]}, {st[0]}, {g.s_w}")
    a(f"s_lshl_b32 {st[0]}, {st[0]}, 4")
    a(f"v_and_b32 {vt[0]}, 15, {vl}")
    a(f"v_add_u32 {vt[0]}, {st[0]}, {vt[0]}")
    a(f"v_mul_u32_u24 {vt[0]}, 1280, {vt[0]}")
    a(f"v_bfe_u32 {vt[1]}, {vl}, 4, 1")
    a(f"v_lshl_add_u32 {vt[0]}, {vt[1]}, 5, {vt[0]}")
    a(f"v_lshrrev_b32 {vt[2]}, 5, {vl}")
    a(f"v_lshl_add_u32 {vt[0]}, {vt[2]}, 4, {vt[0]}")
    a(f"s_mul_i32 {st[1]}, {g.s_ct}, 160")
    a(f"v_add_u32 {ad[0]}, {st[1]}, {vt[0]}")
    a(f"v_add_u32 {ad[1]}, 64, {ad[0]}")
    a(f"v_add_u32 {ad[2]}, 128, {ad[0]}")
    a(f"v_cmp_eq_u32 vcc, 0, {vt[1]}")
    a(f"v_mov_b32 {vt[3]}, {OOB:#x}")
    a(f"v_cndmask_b32 {ad[2]}, {vt[3]}, {ad[2]}, vcc")
    pair_store(g, op, tmp4, ad, g.r_out, "")
    g.stamp("p5_end")
    V.release(mark); A.release(amark)

def run_phases(g):
    p1(g)
    if g.stop_after == "p1": return
    p2(g)
    if g.stop_after == "p2": return
    p3(g)
    if g.stop_after == "p3": return
    p4(g)
    if g.stop_after == "p4": return
    p5(g)
```

```python
import sys, os
sys.path.insert(0, os.path.dirname(os.path.abspath(__file__)))
from asmlib import *
import post

CNT_OFF   = 0x0
STATX_OFF = 0x10000
CSQ_OFF   = 0x20000
CSGU_OFF  = 0x40000
KVP_OFF   = 0x100000
O_OFF     = 0x300000
H_OFF     = 0x600000
HST_OFF   = 0x900000
ACT_OFF   = 0xA00000
WPK_OFF   = 0x1100000
WDP_OFF   = 0x1400000
DUMP_OFF  = 0x2000000
WS_BYTES  = 0x4000000
S0R, S0C, S1, S2, S3, S4, S4B, S0P = range(8)
OOB = 0x7ffffff0
LOG2E = 1.4426950408889634

def f32hex(x):
    import struct
    return "0x%08x" % struct.unpack("<I", struct.pack("<f", x))[0]

class VM:
    def __init__(self): self.q = []
    def add(self, tag, n=1): self.q += [tag]*n
    def count_after(self, tag):
        if tag not in self.q: return None
        idx = max(i for i, x in enumerate(self.q) if x == tag)
        return len(self.q) - 1 - idx
    def wait(self, *tags):
        ns = [self.count_after(t) for t in tags]
        ns = [n for n in ns if n is not None]
        if not ns: return None
        n = min(ns)
        self.q = self.q[len(self.q)-n:] if n > 0 else []
        return min(n, 63)
    def drain(self): self.q = []

class Gen:
    def __init__(self, stop_after=None, dump=None, stamps=False, opt=None):
        self.opt = opt or {}
        self.a = Asm()
        self.stop_after = stop_after
        self.dump = dump
        self.stamps = stamps
        self.S = Alloc("s", 3, 102)
        self.V = Alloc("v", 1, 256)
        self.A = Alloc("a", 0, 256)
        self.vm = VM()
        self.nstamp = 0

    def wait(self, vm=None, lgkm=None):
        p = []
        if vm is not None: p.append(f"vmcnt({vm})")
        if lgkm is not None: p.append(f"lgkmcnt({lgkm})")
        if p: self.a("s_waitcnt " + " ".join(p))
    def waitvm(self, *tags, lgkm=None):
        self.wait(self.vm.wait(*tags), lgkm)
    def drain(self, lgkm=None):
        self.vm.drain(); self.wait(0, lgkm)
    def stamp(self, name):
        if not self.stamps: return
        a = self.a
        i = self.nstamp; self.nstamp += 1
        self.stamp_names = getattr(self, "stamp_names", []) + [name]
        if i > 0: a(f"v_writelane_b32 {self.v_stamp}, {self.s_st[2*((i-1)%2)]}, {i-1}")
        a(f"s_memtime {self.s_st.sub(2*(i%2),2)}")
        if i == 0: a("s_waitcnt lgkmcnt(0)")

    def srd(self, name, ptr, nbytes):
        a = self.a
        r = self.S(4, 4, name)
        a(f"s_mov_b32 {r[0]}, {ptr[0]}")
        a(f"s_and_b32 {r[1]}, {ptr[1]}, 0xffff")
        a(f"s_mov_b32 {r[2]}, {nbytes}")
        a(f"s_mov_b32 {r[3]}, 0x20000")
        return r

    def prologue(self):
        a, S, V = self.a, self.S, self.V
        pk = R('s', 80, 16); p2 = R('s', 96, 4); p3 = R('s', 100, 2)
        a(f"s_load_dwordx16 {pk}, s[0:1], 0")
        a(f"s_load_dwordx4 {p2}, s[0:1], 64")
        a(f"s_load_dwordx2 {p3}, s[0:1], 80")
        a("s_cmp_ge_u32 s2, 256")
        a("s_cbranch_scc1 L_end")
        self.s_t = S(8, 2)
        st = self.s_t
        self.s_rb = S(); self.s_j = S(); self.s_w = S(); self.s_rb64 = S(); self.s_ct = S()
        self.s_so = S(); self.s_so2 = S(); self.s_cnt = S(); self.s_q = S(); self.s_xb = S()
        if self.stamps:
            self.s_st = S(4, 2)
        a(f"s_and_b32 {st[0]}, s2, 7")
        a(f"s_lshr_b32 {st[1]}, s2, 3")
        a(f"s_lshr_b32 {st[2]}, {st[0]}, 1")
        a(f"s_lshl_b32 {self.s_rb}, {st[2]}, 2")
        a(f"s_lshr_b32 {st[3]}, {st[1]}, 3")
        a(f"s_add_u32 {self.s_rb}, {self.s_rb}, {st[3]}")
        a(f"s_and_b32 {st[3]}, {st[0]}, 1")
        a(f"s_lshl_b32 {self.s_j}, {st[3]}, 3")
        a(f"s_and_b32 {st[4]}, {st[1]}, 7")
        a(f"s_add_u32 {self.s_j}, {self.s_j}, {st[4]}")
        a(f"s_lshl_b32 {self.s_rb64}, {st[2]}, 3")
        a(f"s_lshr_b32 {st[4]}, {st[1]}, 2")
        a(f"s_add_u32 {self.s_rb64}, {self.s_rb64}, {st[4]}")
        a(f"s_lshl_b32 {self.s_ct}, {st[3]}, 2")
        a(f"s_and_b32 {st[4]}, {st[1]}, 3")
        a(f"s_add_u32 {self.s_ct}, {self.s_ct}, {st[4]}")
        a(f"s_mov_b32 {self.s_q}, {st[1]}")
        a(f"s_mov_b32 {self.s_xb}, {st[3]}")
        self.v_l = V(); self.v_dummy = V(); self.v_t = V(8, 2)
        vt = self.v_t
        a(f"v_lshrrev_b32 {vt[0]}, 6, v0")
        a(f"v_and_b32 {self.v_l}, 63, v0")
        a(f"v_readfirstlane_b32 {self.s_w}, {vt[0]}")
        if self.stamps:
            self.v_stamp = V()
            a(f"v_mov_b32 {self.v_stamp}, 0")
        a("s_waitcnt lgkmcnt(0)")
        self.stamp("start")
        self.r_x    = self.srd("x",    pk.sub(0, 2), 2048*640*2)
        self.r_wqkv = self.srd("wqkv", pk.sub(2, 2), 640*1920*2)
        from phases import early_touch
        early_touch(self)
        self.r_wphi = self.srd("wphi", pk.sub(4, 2), 32*400*2)
        self.r_wo   = self.srd("wo",   pk.sub(6, 2), 640*640*2)
        self.r_wg   = self.srd("wg",   pk.sub(10, 2), 640*1536*2)
        self.r_wu   = self.srd("wu",   pk.sub(12, 2), 640*1536*2)
        self.r_wd   = self.srd("wd",   pk.sub(14, 2), 1536*640*2)
        self.r_out  = self.srd("out",  p2.sub(0, 2), 2048*640*2)
        self.r_dbg  = self.srd("dbg",  p2.sub(2, 2), 256)
        self.r_ws   = self.srd("ws",   p3, WS_BYTES)

    def finish(self):
        a = self.a
        if self.stamps:
            vt, st = self.v_t, self.s_t
            a("s_waitcnt lgkmcnt(0)")
            a(f"v_writelane_b32 {self.v_stamp}, {self.s_st[2*((self.nstamp-1)%2)]}, {self.nstamp-1}")
            a(f"s_lshl_b32 {st[0]}, s2, 2")
            a(f"s_add_u32 {st[0]}, {st[0]}, {self.s_w}")
            a(f"s_lshl_b32 {st[0]}, {st[0]}, 8")
            a(f"s_add_u32 {st[0]}, {st[0]}, {WS_BYTES - 0x100000}")
            a(f"v_lshlrev_b32 {vt[0]}, 2, {self.v_l}")
            a(f"v_add_u32 {vt[0]}, {st[0]}, {vt[0]}")
            a(f"buffer_store_dword {self.v_stamp}, {vt[0]}, {self.r_ws}, 0 offen")
        a("s_waitcnt vmcnt(0)")
        a.label("L_end")
        a("s_endpgm")

    def dump_regs(self, regs, region=0):
        a, vt, st = self.a, self.v_t, self.s_t
        n = len(regs)
        a("s_nop 15"); a("s_nop 15")
        a(f"s_lshl_b32 {st[0]}, s2, 2")
        a(f"s_add_u32 {st[0]}, {st[0]}, {self.s_w}")
        a(f"s_mul_i32 {st[0]}, {st[0]}, {n*256}")
        a(f"s_add_u32 {st[0]}, {st[0]}, {DUMP_OFF + region}")
        a(f"v_lshlrev_b32 {vt[0]}, 2, {self.v_l}")
        a(f"v_add_u32 {vt[0]}, {st[0]}, {vt[0]}")
        for i, r in enumerate(regs):
            if i and i % 16 == 0: a(f"v_add_u32 {vt[0]}, 4096, {vt[0]}")
            a(f"buffer_store_dword {r}, {vt[0]}, {self.r_ws}, 0 offen offset:{256*(i%16)}")
        self.drain()

    def signal(self, sid, grp):
        a, st, vt = self.a, self.s_t, self.v_t
        l = a.newlabel("sig")
        a(f"s_cmp_lg_u32 {self.s_w}, 0")
        a(f"s_cbranch_scc1 {l}")
        a(f"s_lshl_b32 {st[0]}, {grp}, 8")
        a(f"s_add_u32 {st[0]}, {st[0]}, {CNT_OFF + sid*16*256}")
        a(f"v_mov_b32 {vt[0]}, {st[0]}")
        a(f"v_mov_b32 {vt[1]}, 1")
        a("s_mov_b64 exec, 1")
        a(f"buffer_atomic_add {vt[1]}, {vt[0]}, {self.r_ws}, 0 offen sc1")
        a("s_mov_b64 exec, -1")
        a.label(l)
    def poll(self, sid, grp, target=16, also=None):
        a, st, vt = self.a, self.s_t, self.v_t
        l = a.newlabel("pe"); lp = a.newlabel("pl")
        a(f"s_cmp_lg_u32 {self.s_w}, 0")
        a(f"s_cbranch_scc1 {l}")
        a(f"s_lshl_b32 {st[0]}, {grp}, 8")
        a(f"s_add_u32 {st[0]}, {st[0]}, {CNT_OFF + sid*16*256}")
        a(f"v_mov_b32 {vt[0]}, {st[0]}")
        if also:
            a(f"s_lshl_b32 {st[0]}, {also[1]}, 8")
            a(f"s_add_u32 {st[0]}, {st[0]}, {CNT_OFF + also[0]*16*256}")
            a(f"v_mov_b32 {vt[2]}, {st[0]}")
        a(f"s_mov_b32 {self.s_cnt}, 0")
        a.label(lp)
        a(f"buffer_load_dword {vt[1]}, {vt[0]}, {self.r_ws}, 0 offen sc1")
        if also:
            a(f"buffer_load_dword {vt[3]}, {vt[2]}, {self.r_ws}, 0 offen sc1")
        a("s_waitcnt vmcnt(0)")
        if also:
            a(f"v_min_u32 {vt[1]}, {vt[1]}, {vt[3]}")
        a(f"v_readfirstlane_b32 {st[1]}, {vt[1]}")
        a(f"s_add_u32 {self.s_cnt}, {self.s_cnt}, 1")
        a(f"s_cmp_ge_u32 {st[1]}, {target}")
        a(f"s_cbranch_scc1 {l}")
        a(f"s_cmp_lt_u32 {self.s_cnt}, 200000")
        a(f"s_cbranch_scc1 {lp}")
        a.label(l)
        a("s_barrier")

    def build(self):
        from phases import run_phases
        self.prologue()
        run_phases(self)
        self.finish()
        lines = self.a.lines
        lines = post.hazard_pass_fast(lines, verbose=True)
        lines = post.align_pass(lines, verbose=True)
        body = "\n".join(lines) + "\n"
        nv = 256 + max(self.A.hi, 0)
        hdr = header([f"; @launch grid=(256,1,1) block=(256,1,1) lds=163840"],
                     comments=["fused pre-LN hedgehog linear attention + ReGLU block, one persistent kernel (generated by gen/gen.py)"])
        print("vgpr hi", self.V.hi, "agpr hi", self.A.hi, "sgpr hi", self.S.hi)
        return hdr + kernel_begin(KN) + body + kernel_desc(KN, 512 if self.A.hi else 256, 102, 256)

if __name__ == "__main__":
    import argparse
    ap = argparse.ArgumentParser()
    ap.add_argument("-o", default="sequential_preLN__linear_kernel_hedgehog__glu_gated_reglu__prompt.s")
    ap.add_argument("--stop", default=None)
    ap.add_argument("--dump", default=None)
    ap.add_argument("--stamps", action="store_true")
    ap.add_argument("--opt", action="append", default=[])
    args = ap.parse_args()
    opt = {k: int(v) for k, v in (o.split('=') for o in args.opt)}
    g = Gen(stop_after=args.stop, dump=args.dump, stamps=args.stamps, opt=opt)
    txt = g.build()
    open(args.o, "w").write(txt)
    if args.stamps:
        open(args.o + ".stamps", "w").write("\n".join(g.stamp_names))
```
